```python
import torch

def _softmax(x, axis=-1):
    return torch.softmax(x, dim=axis)
def _gelu(x):
    return torch.nn.functional.gelu(x, approximate="tanh")
def _silu(x):
    return torch.nn.functional.silu(x)
def _sigmoid(x):
    return torch.sigmoid(x)
def _layernorm(x, axis=-1, eps=1e-5):
    m = x.mean(dim=axis, keepdim=True)
    v = x.var(dim=axis, keepdim=True, unbiased=False)
    return (x - m) / torch.sqrt(v + eps)
def _scatter_add(tgt, idx, src, axis=0):
    return tgt.clone().index_add_(axis, idx, src)
def _segment_sum(src, seg, n):
    out = torch.zeros((n,) + src.shape[1:], dtype=src.dtype)
    return out.index_add_(0, seg, src)
def _pad(x, pw):
    flat = tuple(v for pair in reversed(pw) for v in pair)
    return torch.nn.functional.pad(x, flat)

kernel_name = 'interleave_layers__sliding_block__mixer_token_mlp__prompt'

def setup_inputs():

    _w = (lambda a: (lambda t: t.to(torch.bfloat16) if t.is_floating_point() else t)(torch.as_tensor(a)))
    def _A_setup():
        B, S, D = 1, 2048, 448
        return {
            "x": _w((lambda *s: torch.randn(*s, dtype=torch.bfloat16) * 0.05)(B, S, D)),
            "wqkv": _w((lambda *s: torch.randn(*s, dtype=torch.bfloat16) * 0.05)(D, 3 * D)),
            "wo": _w((lambda *s: torch.randn(*s, dtype=torch.bfloat16) * 0.05)(D, D)),
        }
    _A_in = _A_setup()

    def _B_setup():
        B, S, D, F = 1, 2048, 448, 1792
        return {
            "x": _w((lambda *s: torch.randn(*s, dtype=torch.bfloat16) * 0.05)(B, S, D)),
            "w1": _w((lambda *s: torch.randn(*s, dtype=torch.bfloat16) * 1.6)(S, F) * (S ** -0.5)),
            "b1": _w((lambda *s: torch.randn(*s, dtype=torch.bfloat16) * 12.8)(F) * 0.02),
            "w2": _w((lambda *s: torch.randn(*s, dtype=torch.bfloat16) * 0.8)(F, S) * (F ** -0.5)),
            "b2": _w((lambda *s: torch.randn(*s, dtype=torch.bfloat16) * 12.8)(S) * 0.02),
        }
    _B_in = _B_setup()

    return {
        "A_x": _A_in["x"],
        "A_wqkv": _A_in["wqkv"],
        "A_wo": _A_in["wo"],
        "B_x": _B_in["x"],
        "B_w1": _B_in["w1"],
        "B_b1": _B_in["b1"],
        "B_w2": _B_in["w2"],
        "B_b2": _B_in["b2"],
    }

def reference(A_x, A_wqkv, A_wo, B_x, B_w1, B_b1, B_w2, B_b2):
    def _A_ref(x, wqkv, wo):
        B, S, D = x.shape
        H = 16; Dh = D // H; W = 256
        qkv = (lambda x, *d: x.permute(*d))((x @ wqkv).reshape(B, S, 3, H, Dh), 2, 0, 3, 1, 4)
        q, k, v = qkv[0], qkv[1], qkv[2]
        scores = torch.einsum("bhqd,bhkd->bhqk", q, k) * (Dh ** -0.5)
        idx = torch.arange(S)
        mask = (idx[:, None] - idx[None, :] >= 0) & (idx[:, None] - idx[None, :] < W)
        scores = torch.where(mask[None, None], scores, -1e9)
        p = _softmax(scores, axis=-1)
        o = torch.einsum("bhqk,bhkd->bhqd", p, v)
        return (lambda x, *d: x.permute(*d))(o, 0, 2, 1, 3).reshape(B, S, D) @ wo

    def _B_ref(x, w1, b1, w2, b2):
        B, S, D = x.shape
        h = _layernorm(x, axis=-1)
        u = torch.einsum("bsd,sf->bdf", h, w1) + b1
        u = _gelu(u)
        y = torch.einsum("bdf,fs->bds", u, w2) + b2
        return (lambda x, *d: x.permute(*d))(y, 0, 2, 1)

    x = A_x
    x = x + _A_ref(_layernorm(x, axis=-1), A_wqkv, A_wo)
    x = x + _B_ref(_layernorm(x, axis=-1), B_w1, B_b1, B_w2, B_b2)
    x = x + _A_ref(_layernorm(x, axis=-1), A_wqkv, A_wo)
    x = x + _B_ref(_layernorm(x, axis=-1), B_w1, B_b1, B_w2, B_b2)
    return x
```

```python
import re

REG_RE = re.compile(r'^(-|\|)?(?:abs\()?([vsa])(?:(\d+)|\[(\d+):(\d+)\])\)?\|?$')

def regs_of(tok):
    tok = tok.strip()
    if tok in ('vcc',): return {('s', 106), ('s', 107)}
    if tok == 'vcc_lo': return {('s', 106)}
    if tok == 'vcc_hi': return {('s', 107)}
    if tok == 'exec': return {('s', 126), ('s', 127)}
    if tok == 'm0': return {('s', 124)}
    m = REG_RE.match(tok)
    if not m: return set()
    f = m.group(2)
    if m.group(3) is not None:
        lo = hi = int(m.group(3))
    else:
        lo, hi = int(m.group(4)), int(m.group(5))
    return {(f, i) for i in range(lo, hi + 1)}

TRANS = ('v_exp_f32', 'v_log_f32', 'v_rcp_f32', 'v_rsq_f32', 'v_sqrt_f32', 'v_sin_f32', 'v_cos_f32')
VCC = {('s', 106), ('s', 107)}
EXEC = {('s', 126), ('s', 127)}
M0 = {('s', 124)}

class Ins:
    __slots__ = ('text', 'mn', 'kind', 'rd', 'wr', 'passes', 'srcC', 'srcAB', 'dpp', 'nops', 'target', 'label', 'wide_store', 'lds_m0', 'sconst')
    def __init__(self, text):
        self.text = text
        self.kind = 'other'; self.rd = set(); self.wr = set(); self.passes = 0
        self.srcC = set(); self.srcAB = set(); self.dpp = False; self.nops = 1
        self.target = None; self.label = None; self.wide_store = set(); self.lds_m0 = False
        self.sconst = set()
        t = text.split(';')[0].strip()
        if not t:
            self.kind = 'comment'; self.nops = 0; self.mn = ''; return
        if t.endswith(':'):
            self.kind = 'label'; self.label = t[:-1]; self.nops = 0; self.mn = ''; return
        if t == 'CODEPF':
            self.kind = 'other'; self.nops = 1; self.mn = ''; return
        if t.startswith('.'):
            self.kind = 'directive'; self.nops = 0; self.mn = ''; return
        parts = t.split(None, 1)
        mn = parts[0]; self.mn = mn
        rest = parts[1] if len(parts) > 1 else ''
        ops = []; cur = ''; depth = 0
        for ch in rest:
            if ch in '[(': depth += 1
            if ch in '])': depth -= 1
            if ch == ',' and depth == 0:
                ops.append(cur.strip()); cur = ''
            else:
                cur += ch
        if cur.strip(): ops.append(cur.strip())
        mods = ''
        if ops:
            last = ops[-1].split(None, 1)
            if len(last) > 1:
                ops[-1] = last[0]; mods = last[1]
        R = [regs_of(o) for o in ops]
        allr = set().union(*R) if R else set()
        if mn == 's_nop':
            self.kind = 'nop'; self.nops = int(ops[0], 0) + 1; return
        if mn.startswith('s_cbranch') or mn == 's_branch':
            self.kind = 'branch'; self.target = ops[0]
            if 'vcc' in mn: self.rd = set(VCC)
            if 'exec' in mn: self.rd = set(EXEC)
            return
        if mn in ('s_waitcnt', 's_barrier', 's_endpgm', 's_setprio', 's_sleep'):
            self.kind = 'sctl'; return
        if mn.startswith('s_load') or mn.startswith('s_memtime') or mn.startswith('s_memrealtime'):
            self.kind = 'smem'; self.wr = R[0]; self.rd = set().union(*R[1:]) if len(R) > 1 else set(); return
        if mn.startswith('s_cmp') or mn.startswith('s_bitcmp'):
            self.kind = 'salu'; self.rd = allr; return
        if mn.startswith('s_'):
            self.kind = 'salu'; self.wr = set(R[0]); self.rd = set().union(*R[1:]) if len(R) > 1 else set()
            if 'saveexec' in mn: self.wr |= EXEC; self.rd |= EXEC
            if mn in ('s_addk_i32', 's_mulk_i32'): self.rd |= R[0]
            return
        if mn.startswith('v_mfma'):
            self.kind = 'mfma'
            self.passes = 8 if '32x32x16' in mn else (4 if ('16x16x32' in mn or '16x16x16' in mn) else 16)
            self.wr = R[0]; self.srcAB = R[1] | R[2]; self.srcC = R[3]; self.rd = self.srcAB | self.srcC
            return
        if mn.startswith('v_'):
            self.kind = 'trans' if mn.replace('_e32', '').replace('_e64', '') in TRANS else 'valu'
            self.dpp = ('row_' in mods or 'quad_perm' in mods or 'wave_' in mods)
            if mn.startswith('v_cmp'):
                self.wr = set(R[0]); self.rd = set().union(*R[1:])
                if mn.startswith('v_cmpx'): self.wr |= EXEC
            elif mn.startswith('v_permlane') and 'swap' in mn:
                self.wr = R[0] | R[1]; self.rd = R[0] | R[1]; self.kind = 'perm'
            elif mn.startswith(('v_add_co', 'v_addc_co', 'v_sub_co', 'v_subb_co', 'v_subrev_co')):
                self.wr = R[0] | R[1]; self.rd = set().union(*R[2:])
            else:
                self.wr = set(R[0]); self.rd = set().union(*R[1:]) if len(R) > 1 else set()
                if mn.startswith(('v_fmac', 'v_dot2c', 'v_pk_fmac', 'v_mac', 'v_writelane')): self.rd |= R[0]
                if self.dpp: self.rd |= R[0]
                if mn.startswith('v_cndmask') and len(ops) == 3: self.rd |= VCC
            self.sconst = {r for r in self.rd if r[0] == 's'}
            return
        if mn.startswith(('buffer_', 'global_')):
            toks = mods.split()
            if mn.startswith(('buffer_inv', 'buffer_wbl2')):
                self.kind = 'vmem'; return
            lds = 'lds' in toks or 'lds' in (ops[-1].split() if ops else []) or '_lds_' in mn
            if lds:
                self.kind = 'vmem'; self.rd = allr | M0; self.lds_m0 = True; return
            if 'load' in mn:
                self.kind = 'vmem'; self.wr = R[0]; self.rd = set().union(*R[1:]); return
            if 'store' in mn:
                self.kind = 'vmem'; self.rd = allr
                if mn.startswith('buffer_'): data = R[0]
                else: data = R[1]
                if 'x4' in mn or 'x3' in mn: self.wide_store = data
                return
            if 'atomic' in mn:
                self.kind = 'vmem'; self.rd = allr
                if 'sc0' in toks: self.wr = R[0]
                return
            raise ValueError(text)
        if mn.startswith('ds_'):
            self.kind = 'ds'
            if 'addtid' in mn: self.lds_m0 = True; self.rd |= M0
            if mn.startswith(('ds_read', 'ds_bpermute', 'ds_permute', 'ds_swizzle')):
                self.wr = R[0]; self.rd |= set().union(*R[1:]) if len(R) > 1 else set()
            else:
                self.rd |= allr
            return
        raise ValueError('unknown instr: ' + text)

def need_states(p, c):
    n = 0
    isvalu = lambda x: x.kind in ('valu', 'trans', 'perm')
    pv = {r for r in p.wr if r[0] in 'va'}
    ps = {r for r in p.wr if r[0] == 's'}
    if isvalu(p):
        if c.kind == 'mfma' and pv & c.rd: n = max(n, 2)
        if c.kind == 'vmem' and ps & c.rd: n = max(n, 5)
        if isvalu(c) and ps & c.sconst:
            n = max(n, 4 if c.mn.startswith(('v_readlane', 'v_writelane')) else 2)
        if c.mn.startswith(('v_readlane', 'v_readfirstlane')) and pv & c.rd: n = max(n, 1)
        if isvalu(c) and c.dpp and pv & c.rd: n = max(n, 2)
        if c.kind == 'perm' and pv & c.rd: n = max(n, 2)
        if p.kind == 'trans' and (pv & c.rd) and c.kind != 'trans': n = max(n, 1)
        if p.kind == 'trans' and (pv & c.rd) and c.kind == 'trans': n = max(n, 1)
        if c.kind == 'branch' and ps & c.rd: n = max(n, 2)
        if c.kind == 'salu' and ps & c.rd: n = max(n, 1)
        if (EXEC & p.wr) and (isvalu(c) or c.kind == 'mfma'): n = max(n, 5)
    if p.kind == 'mfma':
        big = {2: 5, 4: 8, 8: 12, 16: 20}[p.passes]
        ovl = {2: 4, 4: 6, 8: 10, 16: 18}[p.passes]
        if c.kind == 'mfma':
            if p.wr & c.srcAB: n = max(n, big)
            if p.wr & c.srcC:
                if c.srcC == p.wr and c.passes == p.passes: pass
                else: n = max(n, ovl)
            elif p.wr & c.wr: n = max(n, ovl)
        elif (p.wr & (c.rd | c.wr)): n = max(n, big)
        war = {2: 1, 4: 3, 8: 7, 16: 15}[p.passes]
        if (isvalu(c) or c.kind in ('ds', 'vmem')) and (p.srcC & c.wr): n = max(n, war)
    if p.wide_store and (p.wide_store & c.wr):
        n = max(n, 2 if isvalu(c) else 1)
    if p.kind == 'salu' and (M0 & p.wr) and c.lds_m0: n = max(n, 1)
    return n

class Asm:
    def __init__(self):
        self.ins = []
        self.uid = 0
    def e(self, text):
        for line in text.strip('\n').split('\n'):
            self.ins.append(Ins(line.rstrip()))
    def label(self, name): self.e(name + ':')
    def newlabel(self, base='L'):
        self.uid += 1
        return f'{base}_{self.uid}'
    WINDOW = 22
    def _fix_linear(self):
        out = []
        for c in self.ins:
            if c.nops and c.kind not in ('nop',):
                need = 0; dist = 0
                for p in reversed(out):
                    if p.nops == 0: continue
                    if dist >= self.WINDOW: break
                    k = need_states(p, c)
                    if k > dist: need = max(need, k - dist)
                    dist += p.nops
                while need > 0:
                    k = min(need, 16)
                    out.append(Ins(f'  s_nop {k-1}'))
                    need -= k
            out.append(c)
        self.ins = out
    def _fix_branches(self):
        changed = False
        lab = {i.label: k for k, i in enumerate(self.ins) if i.kind == 'label'}
        k = 0
        while k < len(self.ins):
            b = self.ins[k]
            if b.kind == 'branch' and b.target in lab:
                prods = []; d = 1
                j = k - 1
                while j >= 0 and d < self.WINDOW:
                    p = self.ins[j]
                    if p.nops: prods.append((p, d)); d += p.nops
                    j -= 1
                need = 0
                j = lab[b.target]; d2 = 0
                while j < len(self.ins) and d2 < self.WINDOW:
                    c = self.ins[j]
                    if c.nops:
                        if c.kind != 'nop':
                            for p, d1 in prods:
                                kk = need_states(p, c)
                                if kk > d1 + d2: need = max(need, kk - d1 - d2)
                        d2 += c.nops
                        if c.kind == 'branch' and c.mn == 's_branch': break
                    j += 1
                if need:
                    ins = []
                    while need > 0:
                        q = min(need, 16); ins.append(Ins(f'  s_nop {q-1}')); need -= q
                    self.ins[k:k] = ins
                    lab = {i.label: kk for kk, i in enumerate(self.ins) if i.kind == 'label'}
                    k += len(ins); changed = True
            k += 1
        return changed
    def text(self):
        self._fix_linear()
        while self._fix_branches(): pass
        return '\n'.join(i.text for i in self.ins) + '\n'
```

```python
import sys, math
sys.path.insert(0, 'gen')
from asmlib import Asm

NAME = 'interleave_layers__sliding_block__mixer_token_mlp__prompt'
S, D, H, DH, F = 2048, 448, 16, 28, 1792

GF_OFF = 0
XF_OFF = 0x8000
ACT0 = 0x100000
LSTRIDE = 0x1000000
QF = 0x000000
KF = 0x200000
VF = 0x400000
OF = 0x600000
ST = 0x800000
HT = 0x900000
UF = 0xB00000
X2 = 0xD00000
WS_SIZE = 0x10000000

LDS_TOTAL = 163840
RES = 146432
SCR = 131072

sWG, sX, sM, sW, sLAY = 2, 4, 5, 6, 7
WSR = 's[8:11]'; AR = 's[12:15]'; BR = 's[16:19]'; DBGR = 's[20:23]'
sLOFF = 48
sPH = 49
sSBLK, sDBLK, sMQ = 50, 51, 52
sSPIN = 53
P_X, P_WQKV, P_WO, P_W1, P_B1, P_W2, P_B2 = 64, 66, 68, 72, 74, 76, 78
P_OUT, P_DBG, P_WS = 80, 82, 84

LOG2E = 1.4426950408889634
def f32bits(x):
    import struct
    return struct.unpack('<I', struct.pack('<f', x))[0]

class Gen:
    def __init__(self, nph=10, timing=False):
        self.a = Asm()
        self.nph = nph
        self.timing = timing
    def e(self, t): self.a.e(t)

    def srd(self, r, ptr, size, off=None):
        lo = int(r[2:r.index(':')])
        if off is None:
            self.e(f'  s_mov_b32 s{lo}, s{ptr}\n  s_mov_b32 s{lo+1}, s{ptr+1}')
        else:
            self.e(f'  s_add_u32 s{lo}, s{ptr}, {off}\n  s_addc_u32 s{lo+1}, s{ptr+1}, 0')
        self.e(f'  s_mov_b32 s{lo+2}, {size}\n  s_mov_b32 s{lo+3}, 0x20000')

    def signal(self, ph):
        L = self.a.newlabel('L_sig')
        self.e(f'''
  s_waitcnt vmcnt(0) lgkmcnt(0)
  s_barrier
  s_cmp_lg_u32 s{sW}, 0
  s_cbranch_scc1 {L}
  s_add_u32 s24, s{sPH}, {ph}
  s_lshl_b32 s25, s{sWG}, 7
  v_mov_b32 v4, s24
  v_mov_b32 v5, s25
  s_mov_b64 exec, 1
  buffer_store_dword v4, v5, {WSR}, 0 offen sc1
  s_mov_b64 exec, -1
{L}:''')

    def poll(self, vaddr, starget, vtmp=4, off=0):
        L = self.a.newlabel('L_poll'); Ld = self.a.newlabel('L_polld')
        tgt = f's{starget}' if isinstance(starget, int) else starget
        self.e(f'''
  s_mov_b32 s{sSPIN}, 0x400000
{L}:
  buffer_load_dword v{vtmp}, v{vaddr}, {WSR}, 0 offen offset:{off} sc1
  s_waitcnt vmcnt(0)
  v_cmp_gt_u32 vcc, {tgt}, v{vtmp}
  s_cbranch_vccz {Ld}
  s_sub_u32 s{sSPIN}, s{sSPIN}, 1
  s_cmp_lg_u32 s{sSPIN}, 0
  s_cbranch_scc1 {L}
{Ld}:''')

    def stamp(self, idx):
        if not self.timing: return
        L = self.a.newlabel('L_ts')
        self.e(f'''
  s_cmp_lg_u32 s{sW}, 0
  s_cbranch_scc1 {L}
  s_memrealtime s[46:47]
  s_waitcnt lgkmcnt(0)
  v_mov_b32 v4, s46
  s_lshl_b32 s25, s{sWG}, 8
  s_lshl_b32 s24, s{sPH}, 4
  s_add_u32 s25, s25, s24
  s_add_u32 s25, s25, {0x80000 + idx*4}
  v_mov_b32 v5, s25
  s_mov_b64 exec, 1
  buffer_store_dword v4, v5, {WSR}, 0 offen
  s_mov_b64 exec, -1
{L}:''')

    def prologue(self):
        e = self.e
        e(f'''
  s_cmp_ge_u32 s2, 256
  s_cbranch_scc1 L_end
  s_load_dwordx16 s[64:79], s[0:1], 0
  s_load_dwordx4 s[80:83], s[0:1], 64
  s_load_dwordx2 s[84:85], s[0:1], 80
  s_and_b32 s{sX}, s2, 7
  s_lshr_b32 s{sM}, s2, 3
  v_lshrrev_b32 v3, 6, v0
  v_and_b32 v1, 63, v0
  v_readfirstlane_b32 s{sW}, v3
  v_lshlrev_b32 v2, 4, v1
  s_mul_i32 s24, s{sM}, 37
  s_lshr_b32 s{sMQ}, s24, 8          ; m/7  (m<32)
  s_mul_i32 s24, s{sMQ}, 7
  s_sub_u32 s{sDBLK}, s{sM}, s24     ; m%7
  s_lshl_b32 s24, s{sX}, 2
  s_add_u32 s{sSBLK}, s24, s{sMQ}
  s_mov_b32 s{sLAY}, 0
  s_mov_b32 s{sPH}, 0
  s_mov_b32 s{sLOFF}, {ACT0}
  s_waitcnt lgkmcnt(0)''')
        self.srd(WSR, P_WS, WS_SIZE)
        self.srd(DBGR, P_DBG, 256)
        L1 = self.a.newlabel('L_z'); L2 = self.a.newlabel('L_z')
        e(f'''
  v_mov_b32 v4, 0
  s_cmp_ge_u32 s{sM}, 28
  s_cbranch_scc1 {L1}
  s_and_b32 s24, s{sW}, 3
  s_lshl_b32 s25, s{sSBLK}, 2
  s_add_u32 s24, s24, s25            ; rt
  s_lshl_b32 s24, s24, 4
  s_lshr_b32 s25, s{sW}, 2
  s_add_u32 s24, s24, s25
  s_lshl_b32 s25, s{sDBLK}, 1
  s_add_u32 s24, s24, s25            ; rt*16+part
  s_lshl_b32 s24, s24, 2
  s_add_u32 s24, s24, {XF_OFF}
  v_lshlrev_b32 v5, 13, v1
  v_add_u32 v5, s24, v5
  s_mov_b64 exec, 3
  buffer_store_dword v4, v5, {WSR}, 0 offen sc1
  s_mov_b64 exec, -1
{L1}:
  s_cmp_lg_u32 s{sW}, 0
  s_cbranch_scc1 {L2}
  s_lshl_b32 s25, s{sWG}, 7
  v_mov_b32 v5, s25
  s_mov_b64 exec, 1
  buffer_store_dword v4, v5, {WSR}, 0 offen sc1
  s_mov_b64 exec, -1
{L2}:
  s_waitcnt vmcnt(0)
  s_barrier
''')
        L3 = self.a.newlabel('L_z')
        e(f'''
  s_cmp_lg_u32 s{sW}, 0
  s_cbranch_scc1 {L3}
  s_getreg_b32 s24, hwreg(HW_REG_XCC_ID)
  s_and_b32 s24, s24, 15
  s_or_b32 s24, s24, 0x80
  v_mov_b32 v4, s24
  v_mov_b32 v5, s{sWG}
  s_mov_b64 exec, 1
  buffer_store_byte v4, v5, {DBGR}, 0 offen sc1
  s_mov_b64 exec, -1
{L3}:''')
        L4 = self.a.newlabel('L_res')
        self.srd(AR, P_X, S*D*2)
        e(f'''
  s_cmp_ge_u32 s{sM}, 28
  s_cbranch_scc1 {L4}
  s_mul_i32 s24, s{sSBLK}, {64*896}
  s_lshl_b32 s25, s{sDBLK}, 7
  s_add_u32 s24, s24, s25
  s_lshl_b32 s25, s{sW}, 4
  s_add_u32 s24, s24, s25
  v_mul_u32_u24 v5, 896, v1
  buffer_load_dwordx4 v[8:11], v5, {AR}, s24 offen
  v_mul_u32_u24 v6, 272, v1
  s_lshl_b32 s25, s{sW}, 5
  s_add_u32 s25, s25, {RES}
  v_add_u32 v6, s25, v6
  s_waitcnt vmcnt(0)
  v_lshlrev_b32 v12, 16, v8
  v_and_b32 v13, 0xffff0000, v8
  v_lshlrev_b32 v14, 16, v9
  v_and_b32 v15, 0xffff0000, v9
  v_lshlrev_b32 v16, 16, v10
  v_and_b32 v17, 0xffff0000, v10
  v_lshlrev_b32 v18, 16, v11
  v_and_b32 v19, 0xffff0000, v11
  ds_write_b128 v6, v[12:15]
  ds_write_b128 v6, v[16:19] offset:16
  s_waitcnt lgkmcnt(0)
{L4}:''')

    def handshake(self):
        L = self.a.newlabel('L_hs'); Ld = self.a.newlabel('L_hsd'); Ls = self.a.newlabel('L_hss')
        self.e(f'''
  s_cmp_lg_u32 s{sLAY}, 0
  s_cbranch_scc1 {Ls}
  v_lshlrev_b32 v5, 2, v1
  s_mov_b32 s{sSPIN}, 0x400000
  s_mov_b32 s24, 0x80808080
{L}:
  buffer_load_dword v4, v5, {DBGR}, 0 offen sc1
  s_waitcnt vmcnt(0)
  v_and_b32 v4, s24, v4
  v_cmp_ne_u32 vcc, s24, v4
  s_cbranch_vccz {Ld}
  s_sub_u32 s{sSPIN}, s{sSPIN}, 1
  s_cmp_lg_u32 s{sSPIN}, 0
  s_cbranch_scc1 {L}
{Ld}:
{Ls}:''')

    def qkv_prefetch(self):
        e = self.e
        Wf = lambda ks, tt: 88 + (ks*3 + tt)*4
        self.srd(AR, P_WQKV, D*3*D*2)
        for p in range(3):
            e(f'''
  v_add_u32 v3, {p*64}, v1
  v_mul_u32_u24 v4, 171, v3
  v_lshrrev_b32 v4, 11, v4
  v_mul_u32_u24 v5, 12, v4
  v_sub_u32 v5, v3, v5                ; c12
  v_lshrrev_b32 v6, 2, v5             ; part
  v_and_b32 v5, 3, v5                 ; c'
  v_bfe_u32 v7, v4, 3, 1
  v_lshlrev_b32 v7, 1, v7
  v_xor_b32 v5, v5, v7                ; c
  v_mul_u32_u24 v4, 2688, v4
  v_mul_u32_u24 v6, 896, v6
  v_lshlrev_b32 v5, 4, v5
  v_add3_u32 v{8+p}, v4, v5, v6''')
        Lskip = self.a.newlabel('L_qw')
        e(f'''
  s_and_b32 s24, s{sM}, 15
  s_mul_i32 s24, s24, 56
  s_mul_i32 s25, s{sW}, {16*2688}
  s_add_u32 s24, s24, s25
  s_mul_i32 s26, s{sW}, 3072''')
        for gi in range(4):
            if gi == 3:
                e(f'  s_cmp_ge_u32 s{sW}, 4\n  s_cbranch_scc1 {Lskip}')
            for p in range(3):
                e(f'''
  s_add_u32 m0, s26, {gi*8*3072 + p*1024}
  s_add_u32 s27, s24, {gi*8*16*2688}
  buffer_load_dwordx4 v{8+p}, {AR}, s27 offen lds''')
        e(f'{Lskip}:')
        e(f'''
  v_lshrrev_b32 v3, 4, v1              ; g
  v_bfe_u32 v4, v1, 2, 2               ; r
  v_lshl_add_u32 v4, v3, 3, v4         ; 8g+r
  v_mul_u32_u24 v4, 192, v4
  v_and_b32 v5, 1, v1                  ; cc&1
  v_lshl_add_u32 v4, v5, 3, v4
  v_bfe_u32 v5, v1, 1, 1               ; cc>>1
  v_and_b32 v6, 1, v3
  v_lshlrev_b32 v6, 1, v6              ; 2*(g&1)
  v_xor_b32 v5, v5, v6
  v_xor_b32 v6, 2, v5
  v_lshl_add_u32 v24, v5, 4, v4        ; base(0)
  v_lshl_add_u32 v25, v6, 4, v4        ; base(1)
  s_and_b32 s24, s{sW}, 1              ; j
  s_cmp_eq_u32 s24, 0
  s_cselect_b64 vcc, -1, 0
  s_lshl_b32 s25, s24, 6
  v_cndmask_b32 v26, v25, v24, vcc     ; base(j)
  v_add_u32 v26, 128, v26
  v_add_u32 v24, s25, v24
  v_add_u32 v25, s25, v25
  v_mov_b32 v16, 0x3f803f80
  v_mov_b32 v17, 0x3f803f80
  v_mov_b32 v18, 0x3f803f80
  v_mov_b32 v19, 0x3f803f80
  s_waitcnt vmcnt(0)
  s_barrier''')
        for ks in range(14):
            if ks == 8:
                e('  v_add_u32 v24, 49152, v24\n  v_add_u32 v25, 49152, v25\n  v_add_u32 v26, 49152, v26')
            o = (ks % 8)*6144 if ks >= 8 else ks*6144
            for tt in range(3):
                r = Wf(ks, tt)
                e(f'  ds_read_b64_tr_b16 v[{r}:{r+1}], v{24+tt} offset:{o}\n  ds_read_b64_tr_b16 v[{r+2}:{r+3}], v{24+tt} offset:{o+768}')
            if ks % 2 == 1: e('  s_waitcnt lgkmcnt(0)')
        e('  s_waitcnt lgkmcnt(0)\n  s_barrier')
        for ks in range(14):
            for tt in range(3):
                r = Wf(ks, tt); c = 52 + tt*4
                C = '0' if ks == 0 else f'v[{c}:{c+3}]'
                if tt < 2:
                    e(f'  v_mfma_f32_16x16x32_bf16 v[{c}:{c+3}], v[{r}:{r+3}], v[16:19], {C}')
                else:
                    e(f'  v_mfma_f32_16x16x32_bf16 v[{c}:{c+3}], v[16:19], v[{r}:{r+3}], {C}')

    def qkv_main(self):
        e = self.e
        Wf = lambda ks, tt: 88 + (ks*3 + tt)*4
        acc = lambda rt, tt: 64 + (rt*3 + tt)*4
        xf = lambda b, rt: 36 + (b*2 + rt)*4
        e(f'''
  s_cmp_eq_u32 s{sLAY}, 0
  s_add_u32 s24, s{P_WS}, {ACT0 + X2}
  s_addc_u32 s25, s{P_WS+1}, 0
  s_cmp_eq_u32 s{sLAY}, 0
  s_cselect_b32 s12, s{P_X}, s24
  s_cselect_b32 s13, s{P_X+1}, s25
  s_mov_b32 s14, {S*D*2}
  s_mov_b32 s15, 0x20000''')
        Lnw = self.a.newlabel('L_qnw')
        e(f'''
  s_cmp_eq_u32 s{sLAY}, 0
  s_cbranch_scc1 {Lnw}
  v_min_u32 v3, 13, v1                 ; 0..13
  s_lshr_b32 s24, s{sM}, 4
  s_mul_i32 s24, s24, 14               ; m' base = (2*(m>>4))*7
  v_add_u32 v3, s24, v3
  v_lshlrev_b32 v3, 3, v3
  v_add_u32 v3, s{sX}, v3
  v_lshlrev_b32 v3, 7, v3''')
        self.poll(3, sPH)
        e(f'{Lnw}:')
        e(f'''
  s_lshr_b32 s24, s{sM}, 4
  s_lshl_b32 s24, s24, 7
  s_lshl_b32 s25, s{sX}, 8
  s_add_u32 s24, s24, s25
  s_lshl_b32 s25, s{sW}, 4
  s_add_u32 s24, s24, s25
  s_mul_i32 s24, s24, 896
  s_lshl_b32 s26, s{sW}, 14''')
        for n in range(16):
            e(f'''
  v_xor_b32 v3, {n*16}, v2
  s_add_u32 m0, s26, {n*1024}
  s_add_u32 s27, s24, {n*896}
  buffer_load_dwordx4 v3, {AR}, s27 offen sc1 lds''')
        e(f'''
  v_and_b32 v3, 15, v1                 ; il
  v_lshrrev_b32 v4, 4, v1              ; g
  v_and_b32 v5, 3, v3
  v_xor_b32 v5, v5, v4                 ; g ^ (il&3)
  v_and_b32 v6, 12, v3                 ; il&12
  s_lshr_b32 s24, s{sW}, 1
  s_lshl_b32 s24, s24, 15              ; 32*i*1024
  v_lshlrev_b32 v7, 10, v3
  v_add_u32 v7, s24, v7''')
        for q in range(4):
            e(f'''
  v_xor_b32 v8, {4*q}, v6
  v_add_u32 v8, v8, v5
  v_lshl_add_u32 v{28+q}, v8, 4, v7''')
        e(f'''
  v_mov_b32 v32, 0
  v_mov_b32 v33, 0
  v_mov_b32 v34, 0
  v_mov_b32 v35, 0
  v_mov_b32 v23, 0x3f803f80
  s_waitcnt vmcnt(0)
  s_barrier''')
        def rd(ks):
            b = ks & 1
            for rt in range(2):
                r = xf(b, rt)
                e(f'  ds_read_b128 v[{r}:{r+3}], v{28 + (ks & 3)} offset:{(ks >> 2)*256 + rt*16384}')
        rd(0)
        for ks in range(14):
            if ks + 1 < 14:
                rd(ks + 1); e('  s_waitcnt lgkmcnt(2)')
            else:
                e('  s_waitcnt lgkmcnt(0)')
            b = ks & 1
            for rt in range(2):
                x = xf(b, rt)
                for tt in range(3):
                    w = Wf(ks, tt); c = acc(rt, tt)
                    C = '0' if ks == 0 else f'v[{c}:{c+3}]'
                    if tt < 2:
                        e(f'  v_mfma_f32_16x16x32_bf16 v[{c}:{c+3}], v[{w}:{w+3}], v[{x}:{x+3}], {C}')
                    else:
                        e(f'  v_mfma_f32_16x16x32_bf16 v[{c}:{c+3}], v[{x}:{x+3}], v[{w}:{w+3}], {C}')
                for k in range(4):
                    e(f'  v_dot2c_f32_bf16 v{32+2*rt}, v{x+k}, v23\n  v_dot2c_f32_bf16 v{33+2*rt}, v{x+k}, v{x+k}')
        for k in range(4):
            r = 32 + k
            e(f'''
  v_mov_b32 v3, v{r}
  v_permlane32_swap_b32 v3, v{r}
  v_add_f32 v{r}, v3, v{r}
  v_mov_b32 v3, v{r}
  v_permlane16_swap_b32 v3, v{r}
  v_add_f32 v{r}, v3, v{r}''')
        e(f'  s_mov_b32 s24, {f32bits(1.0/448)}\n  s_mov_b32 s25, {f32bits(1e-5)}')
        for rt in range(2):
            su, sq = 32 + 2*rt, 33 + 2*rt
            e(f'''
  v_mul_f32 v{su}, s24, v{su}
  v_mul_f32 v{sq}, s24, v{sq}
  v_fma_f32 v{sq}, -v{su}, v{su}, v{sq}
  v_max_f32 v{sq}, 0, v{sq}
  v_add_f32 v{sq}, s25, v{sq}
  v_rsq_f32 v{sq}, v{sq}''')
        e(f'''
  v_and_b32 v3, 15, v1
  v_lshlrev_b32 v3, 3, v3
  s_lshl_b32 s26, s{sW}, 8
  s_add_u32 s26, s26, {SCR}
  v_add_u32 v3, s26, v3
  ds_write_b64 v3, v[32:33]
  ds_write_b64 v3, v[34:35] offset:128
  v_lshrrev_b32 v4, 4, v1
  v_lshlrev_b32 v4, 5, v4
  v_add_u32 v4, s26, v4
  s_waitcnt lgkmcnt(0)
  ds_read_b128 v[36:39], v4
  ds_read_b128 v[40:43], v4 offset:16
  ds_read_b128 v[44:47], v4 offset:128
  ds_read_b128 v[48:51], v4 offset:144''')
        qs = (DH ** -0.5) * LOG2E
        e(f'''
  s_and_b32 s24, s{sW}, 1
  s_cmp_eq_u32 s24, 0
  s_cselect_b32 s25, {f32bits(qs)}, 1.0
  v_mul_f32 v5, s25, v33
  v_mul_f32 v6, s25, v35
  s_cselect_b32 s27, 0x3f80, 0
  v_mov_b32 v7, s27
  v_cmp_le_u32 s[28:29], 48, v1        ; g == 3''')
        for rt in range(2):
            mu = 32 + 2*rt; rr = 5 + rt
            for tt in range(2):
                c = acc(rt, tt); cs = 52 + tt*4
                for r in range(4):
                    e(f'  v_fma_f32 v{c+r}, -v{mu}, v{cs+r}, v{c+r}\n  v_mul_f32 v{c+r}, v{rr}, v{c+r}')
            o = 8 + rt*4
            a0, a1 = acc(rt, 0), acc(rt, 1)
            e(f'''
  v_cvt_pk_bf16_f32 v{o}, v{a0}, v{a0+1}
  v_cvt_pk_bf16_f32 v{o+1}, v{a0+2}, v{a0+3}
  v_cvt_pk_bf16_f32 v{o+2}, v{a1}, v{a1+1}
  v_cvt_pk_bf16_f32 v{o+3}, v{a1+2}, v{a1+3}
  v_cndmask_b32 v{o+2}, v{o+2}, v7, s[28:29]
  v_cndmask_b32 v{o+3}, v{o+3}, 0, s[28:29]''')
        e(f'''
  s_and_b32 s24, s{sM}, 15             ; h
  s_lshl_b32 s25, s24, 7
  s_lshl_b32 s26, s{sX}, 4
  s_add_u32 s25, s25, s26
  s_lshr_b32 s26, s{sM}, 4
  s_lshl_b32 s26, s26, 3
  s_add_u32 s25, s25, s26
  s_lshr_b32 s26, s{sW}, 1
  s_lshl_b32 s26, s26, 1
  s_add_u32 s25, s25, s26
  s_lshl_b32 s30, s25, 10
  s_and_b32 s26, s{sW}, 1
  s_lshl_b32 s27, s26, 21
  s_add_u32 s27, s27, s30
  s_add_u32 s27, s27, s{sLOFF}
  buffer_store_dwordx4 v[8:11], v2, {WSR}, s27 offen sc1
  buffer_store_dwordx4 v[12:15], v2, {WSR}, s27 offen offset:1024 sc1
  s_lshl_b32 s26, s26, 10
  s_add_u32 s27, s30, s26
  s_add_u32 s27, s27, s{sLOFF}
  s_add_u32 s27, s27, {VF}
  v_and_b32 v3, 15, v1
  v_cmp_le_u32 s[28:29], 12, v3
  s_and_b32 s26, s{sW}, 1
  s_cmp_eq_u32 s26, 1
  s_cselect_b64 s[28:29], s[28:29], 0
  v_cmp_eq_u32 vcc, 12, v3
  v_mov_b32 v7, 0x3f803f80
  s_nop 0
  v_cndmask_b32 v7, 0, v7, vcc
  s_waitcnt lgkmcnt(0)''')
        for rt in range(2):
            c = acc(rt, 2)
            for r in range(4):
                mu = 36 + rt*8 + 2*r
                e(f'  v_fma_f32 v{c+r}, -v{mu}, v60, v{c+r}\n  v_mul_f32 v{c+r}, v{mu+1}, v{c+r}')
            o = 16 + rt*2
            e(f'''
  v_cvt_pk_bf16_f32 v{o}, v{c}, v{c+1}
  v_cvt_pk_bf16_f32 v{o+1}, v{c+2}, v{c+3}
  v_cndmask_b32 v{o}, v{o}, v7, s[28:29]
  v_cndmask_b32 v{o+1}, v{o+1}, v7, s[28:29]''')
        e(f'  buffer_store_dwordx4 v[16:19], v2, {WSR}, s27 offen sc1')

    def att(self):
        e = self.e
        KT, VT = 0, 24576
        Sx = lambda n: 64 + 4*n
        FR = lambda n: 136 + 4*n
        e(f'''
  s_lshl_b32 s24, s{sX}, 1
  s_lshr_b32 s25, s{sM}, 4
  s_add_u32 s24, s24, s25              ; b
  s_and_b32 s25, s{sM}, 15             ; h
  v_min_u32 v3, 2, v1
  v_sub_u32 v3, s24, v3                ; b - k
  v_max_i32 v3, 0, v3
  v_and_b32 v4, 1, v3
  v_lshlrev_b32 v4, 4, v4
  v_add_u32 v4, s25, v4
  v_lshlrev_b32 v4, 3, v4
  v_lshrrev_b32 v3, 1, v3
  v_add_u32 v3, v3, v4
  v_lshlrev_b32 v3, 7, v3
  s_add_u32 s30, s{sPH}, 1''')
        self.poll(3, 30)
        e(f'''
  s_lshl_b32 s26, s24, 3
  s_sub_u32 s26, s26, 16
  s_mul_i32 s27, s{sW}, 3
  s_add_u32 s28, s26, s27              ; kt0+3w
  s_lshl_b32 s29, s25, 7               ; h*128
  s_mul_i32 s31, s{sW}, 3072''')
        for n in range(3):
            e(f'''
  s_add_u32 s32, s28, {n}
  s_add_u32 s33, s32, s29
  s_lshl_b32 s33, s33, 10
  s_add_u32 s33, s33, s{sLOFF}
  s_cmp_lt_i32 s32, 0
  s_cselect_b32 s33, 0x7ff00000, s33
  s_add_u32 s34, s33, {KF}
  s_add_u32 m0, s31, {KT + n*1024}
  s_nop 0
  buffer_load_dwordx4 v2, {WSR}, s34 offen sc1 lds
  s_add_u32 s34, s33, {VF}
  s_add_u32 m0, s31, {VT + n*1024}
  s_nop 0
  buffer_load_dwordx4 v2, {WSR}, s34 offen sc1 lds''')
        e(f'''
  s_lshl_b32 s30, s24, 3
  s_add_u32 s30, s30, s{sW}            ; qt
  s_add_u32 s33, s30, s29
  s_lshl_b32 s33, s33, 10
  s_add_u32 s33, s33, s{sLOFF}
  buffer_load_dwordx4 v[36:39], v2, {WSR}, s33 offen sc1''')
        e(f'''
  v_and_b32 v3, 15, v1
  v_lshrrev_b32 v4, 4, v1
  v_lshlrev_b32 v4, 2, v4              ; 4g
  v_mov_b32 v5, 0xf149f2ca
  s_and_b32 s35, s{sW}, 1
  s_cmp_eq_u32 s35, 0
  s_cselect_b64 s[36:37], -1, 0''')
        for r in range(4):
            e(f'''
  v_add_u32 v6, {r}, v4
  v_cmp_gt_u32 vcc, v6, v3
  s_nop 1
  v_cndmask_b32 v7, v5, 0, vcc         ; old
  v_cndmask_b32 v8, 0, v5, vcc         ; diag
  v_cndmask_b32 v{40+r}, v5, v7, s[36:37]
  v_cndmask_b32 v{44+r}, v7, 0, s[36:37]
  v_cndmask_b32 v{48+r}, 0, v8, s[36:37]
  v_cndmask_b32 v{52+r}, v8, v5, s[36:37]''')
        Lnf = self.a.newlabel('L_nf')
        e(f'''
  s_waitcnt vmcnt(0)
  s_cmp_ge_i32 s28, 0
  s_cbranch_scc1 {Lnf}
  v_lshlrev_b32 v6, 4, v3
  v_add_u32 v6, s31, v6                ; + il*16
  v_mov_b32 v7, 0xf149
  s_mov_b64 exec, 0xffff''')
        for n in range(3):
            Ln = self.a.newlabel('L_nf')
            e(f'''
  s_add_u32 s32, s28, {n}
  s_cmp_ge_i32 s32, 0
  s_cbranch_scc1 {Ln}
  ds_write_b32 v6, v7 offset:{KT + n*1024 + 48*16 + 8}
{Ln}:''')
        e(f'''
  s_mov_b64 exec, -1
{Lnf}:
  s_waitcnt lgkmcnt(0)
  s_barrier
  s_lshr_b32 s32, s{sW}, 1
  s_lshl_b32 s32, s32, 11              ; 2*floor(w/2)*1024
  v_add_u32 v9, s32, v2''')
        for n in range(18):
            e(f'  ds_read_b128 v[{FR(n)}:{FR(n)+3}], v9 offset:{KT + n*1024}')
        for n in range(18):
            e(f'  s_waitcnt lgkmcnt({min(15, 17-n)})')
            C = {0: 'v[40:43]', 1: 'v[44:47]', 16: 'v[48:51]', 17: 'v[52:55]'}.get(n, '0')
            e(f'  v_mfma_f32_16x16x32_bf16 v[{Sx(n)}:{Sx(n)+3}], v[{FR(n)}:{FR(n)+3}], v[36:39], {C}')
        for n in range(18):
            e(f'  ds_read_b128 v[{FR(n)}:{FR(n)+3}], v9 offset:{VT + n*1024}')
        e(f'  v_max3_f32 v10, v64, v65, v66')
        regs = list(range(67, 64 + 72))
        k = 0
        while k + 1 < len(regs):
            e(f'  v_max3_f32 v10, v10, v{regs[k]}, v{regs[k+1]}'); k += 2
        if k < len(regs):
            e(f'  v_max_f32 v10, v10, v{regs[k]}')
        e(f'''
  v_mov_b32 v11, v10
  v_permlane32_swap_b32 v11, v10
  v_max_f32 v10, v11, v10
  v_mov_b32 v11, v10
  v_permlane16_swap_b32 v11, v10
  v_max_f32 v10, v11, v10''')
        for r in range(64, 64 + 72):
            e(f'  v_sub_f32 v{r}, v{r}, v10\n  v_exp_f32 v{r}, v{r}')
        for p in range(9):
            b = 64 + 8*p
            e(f'''
  v_cvt_pk_bf16_f32 v{b}, v{b}, v{b+1}
  v_cvt_pk_bf16_f32 v{b+1}, v{b+2}, v{b+3}
  v_cvt_pk_bf16_f32 v{b+2}, v{b+4}, v{b+5}
  v_cvt_pk_bf16_f32 v{b+3}, v{b+6}, v{b+7}''')
        e('  s_waitcnt lgkmcnt(0)')
        for p in range(9):
            b = 64 + 8*p
            for T in range(2):
                c = 56 + 4*T
                C = '0' if p == 0 else f'v[{c}:{c+3}]'
                f = FR(2*p + T)
                e(f'  v_mfma_f32_16x16x32_bf16 v[{c}:{c+3}], v[{f}:{f+3}], v[{b}:{b+3}], {C}')
        e(f'''
  v_mov_b32 v11, v60
  v_mov_b32 v12, v60
  v_permlane32_swap_b32 v11, v12
  v_mov_b32 v11, v12
  v_permlane16_swap_b32 v11, v12
  v_rcp_f32 v12, v12''')
        for r in range(8):
            e(f'  v_mul_f32 v{56+r}, v{56+r}, v12')
        e(f'''
  v_cvt_pk_bf16_f32 v16, v56, v57
  v_cvt_pk_bf16_f32 v17, v58, v59
  v_cvt_pk_bf16_f32 v18, v60, v61
  v_cvt_pk_bf16_f32 v19, v62, v63
  s_lshl_b32 s33, s30, 4
  s_add_u32 s33, s33, s25
  s_lshl_b32 s33, s33, 10
  s_add_u32 s33, s33, s{sLOFF}
  s_add_u32 s33, s33, {OF}
  buffer_store_dwordx4 v[16:19], v2, {WSR}, s33 offen sc1''')

    def wo_prefetch(self):
        e = self.e
        Wf = lambda hh, nt: 128 + (hh*4 + nt)*4
        self.srd(AR, P_WO, D*D*2)
        e(f'''
  v_lshrrev_b32 v3, 3, v1              ; row8
  v_and_b32 v4, 7, v1                  ; c'
  v_bfe_u32 v5, v3, 1, 2
  v_lshlrev_b32 v5, 1, v5
  v_xor_b32 v4, v4, v5                 ; c
  v_mul_u32_u24 v5, 896, v3
  v_lshl_add_u32 v8, v4, 4, v5         ; voffset
  v_mov_b32 v6, 0x7ff00000
  v_cmp_le_u32 vcc, 4, v3
  s_nop 1
  v_cndmask_b32 v9, v8, v6, vcc
  s_mul_i32 s24, s{sW}, {2*28*896}
  s_lshl_b32 s25, s{sDBLK}, 7
  s_add_u32 s24, s24, s25
  s_lshl_b32 s26, s{sW}, 13''')
        for hh in range(2):
            for n4 in range(4):
                e(f'''
  s_add_u32 m0, s26, {hh*4096 + n4*1024}
  s_add_u32 s27, s24, {(hh*28 + n4*8)*896}
  buffer_load_dwordx4 v{9 if n4 == 3 else 8}, {AR}, s27 offen lds''')
        e(f'''
  v_lshrrev_b32 v3, 4, v1              ; g
  v_bfe_u32 v4, v1, 2, 2               ; r
  v_lshl_add_u32 v5, v3, 2, v4         ; row = 4g+r
  v_bfe_u32 v6, v5, 1, 2               ; sw
  v_lshlrev_b32 v5, 7, v5
  v_and_b32 v7, 1, v1
  v_lshl_add_u32 v5, v7, 3, v5
  v_bfe_u32 v7, v1, 1, 1
  v_lshl_add_u32 v5, v7, 4, v5
  s_lshr_b32 s24, s{sW}, 2
  s_lshl_b32 s24, s24, 15              ; kh*32768
  v_add_u32 v5, s24, v5''')
        for nt in range(4):
            e(f'  v_xor_b32 v7, {nt}, v6\n  v_lshl_add_u32 v{24+nt}, v7, 5, v5')
        e('  s_waitcnt vmcnt(0)\n  s_barrier')
        for hh in range(8):
            for nt in range(4):
                r = Wf(hh, nt)
                e(f'  ds_read_b64_tr_b16 v[{r}:{r+1}], v{24+nt} offset:{hh*4096}\n  ds_read_b64_tr_b16 v[{r+2}:{r+3}], v{24+nt} offset:{hh*4096+2048}')
            e('  s_waitcnt lgkmcnt(0)')
        e('  s_barrier')

    def wo_main(self):
        e = self.e
        Wf = lambda hh, nt: 128 + (hh*4 + nt)*4
        of = lambda hh: 64 + 4*hh
        acc = lambda nt: 96 + 4*nt
        e(f'''
  s_and_b32 s24, s{sW}, 3
  s_lshl_b32 s25, s{sSBLK}, 2
  s_add_u32 s30, s24, s25              ; rt
  s_lshr_b32 s31, s{sW}, 2             ; kh
  s_lshr_b32 s26, s30, 3               ; b
  s_and_b32 s27, s26, 1
  s_lshl_b32 s27, s27, 4
  s_lshl_b32 s28, s31, 3
  s_add_u32 s27, s27, s28              ; (b&1)*16 + 8kh
  v_and_b32 v3, 7, v1
  v_add_u32 v3, s27, v3
  v_lshlrev_b32 v3, 3, v3
  s_lshr_b32 s26, s26, 1
  v_add_u32 v3, s26, v3
  v_lshlrev_b32 v3, 7, v3
  s_add_u32 s32, s{sPH}, 2''')
        self.poll(3, 32)
        e(f'''
  s_lshl_b32 s33, s30, 4
  s_add_u32 s33, s33, s28
  s_lshl_b32 s33, s33, 10
  s_add_u32 s33, s33, s{sLOFF}
  s_add_u32 s33, s33, {OF}''')
        for hh in range(8):
            e(f'  s_add_u32 s34, s33, {hh*1024}\n  buffer_load_dwordx4 v[{of(hh)}:{of(hh)+3}], v2, {WSR}, s34 offen sc1')
        for hh in range(8):
            e(f'  s_waitcnt vmcnt({7-hh})')
            for nt in range(4):
                c = acc(nt); C = '0' if hh == 0 else f'v[{c}:{c+3}]'
                e(f'  v_mfma_f32_16x16x32_bf16 v[{c}:{c+3}], v[{of(hh)}:{of(hh)+3}], v[{Wf(hh,nt)}:{Wf(hh,nt)+3}], {C}')
        La = self.a.newlabel('L_wo'); Lb = self.a.newlabel('L_wo')
        e(f'''
  s_lshl_b32 s24, s{sW}, 11
  s_add_u32 s24, s24, {SCR - 4096}
  v_add_u32 v4, s24, v2
  s_xor_b32 s25, s{sW}, 4
  s_lshl_b32 s25, s25, 11
  s_add_u32 s25, s25, {SCR - 4096}
  v_add_u32 v5, s25, v2
  s_cmp_eq_u32 s31, 0
  s_cbranch_scc0 {La}
  ds_write_b128 v4, v[104:107]
  ds_write_b128 v4, v[108:111] offset:1024
  s_branch {Lb}
{La}:
  ds_write_b128 v4, v[96:99]
  ds_write_b128 v4, v[100:103] offset:1024
  v_mov_b32 v96, v104
  v_mov_b32 v97, v105
  v_mov_b32 v98, v106
  v_mov_b32 v99, v107
  v_mov_b32 v100, v108
  v_mov_b32 v101, v109
  v_mov_b32 v102, v110
  v_mov_b32 v103, v111
{Lb}:
  v_lshrrev_b32 v6, 4, v1
  v_lshlrev_b32 v6, 2, v6
  s_and_b32 s24, s{sW}, 3
  s_lshl_b32 s24, s24, 4
  v_add_u32 v6, s24, v6
  v_mul_u32_u24 v6, 272, v6
  v_and_b32 v7, 15, v1
  v_lshl_add_u32 v6, v7, 2, v6
  s_lshl_b32 s24, s31, 7
  s_add_u32 s24, s24, {RES}
  v_add_u32 v6, s24, v6''')
        for t in range(2):
            for r in range(4):
                e(f'  ds_read_b32 v{112 + t*4 + r}, v6 offset:{r*272 + t*64}')
        e(f'''
  s_waitcnt lgkmcnt(0)
  s_barrier
  ds_read_b128 v[104:107], v5
  ds_read_b128 v[108:111], v5 offset:1024
  s_waitcnt lgkmcnt(0)''')
        for k in range(8):
            e(f'  v_add_f32 v{96+k}, v{96+k}, v{104+k}\n  v_add_f32 v{96+k}, v{96+k}, v{112+k}')
        for t in range(2):
            for r in range(4):
                e(f'  ds_write_b32 v6, v{96 + t*4 + r} offset:{r*272 + t*64}')
        for r in range(4):
            e(f'''
  v_add_f32 v{104+2*r}, v{96+r}, v{100+r}
  v_mul_f32 v{105+2*r}, v{96+r}, v{96+r}
  v_fmac_f32 v{105+2*r}, v{100+r}, v{100+r}''')
        for sh in (8, 4, 2, 1):
            for k in range(8):
                e(f'  v_add_f32 v{104+k}, v{104+k}, v{104+k} row_ror:{sh} row_mask:0xf bank_mask:0xf')
        Lp = self.a.newlabel('L_wo')
        e(f'''
  s_lshl_b32 s24, s{sDBLK}, 1
  s_add_u32 s24, s24, s31              ; part
  s_lshl_b32 s25, s30, 4               ; rt*16
  s_add_u32 s26, s25, s24
  s_lshl_b32 s27, s26, 7
  s_add_u32 s27, s27, s{sLOFF}
  s_add_u32 s27, s27, {ST}
  v_lshrrev_b32 v3, 4, v1
  v_lshlrev_b32 v3, 5, v3              ; g*32
  v_cmp_eq_u32 vcc, 0, v7
  s_and_saveexec_b64 s[36:37], vcc
  buffer_store_dwordx4 v[104:107], v3, {WSR}, s27 offen sc1
  buffer_store_dwordx4 v[108:111], v3, {WSR}, s27 offen offset:16 sc1
  s_mov_b64 exec, s[36:37]
  s_waitcnt vmcnt(0)
  s_lshl_b32 s28, s{sLAY}, 13
  s_add_u32 s28, s28, {XF_OFF}
  s_lshl_b32 s29, s26, 2
  s_add_u32 s29, s29, s28
  v_mov_b32 v4, 1
  v_mov_b32 v5, s29
  s_mov_b64 exec, 1
  buffer_store_dword v4, v5, {WSR}, 0 offen sc1
  s_mov_b64 exec, -1
  s_lshl_b32 s29, s25, 2
  s_add_u32 s29, s29, s28
  v_min_u32 v5, 13, v1
  v_lshlrev_b32 v5, 2, v5
  v_add_u32 v5, s29, v5''')
        self.poll(5, '1')
        e(f'''
  s_lshl_b32 s27, s25, 7
  s_add_u32 s27, s27, s{sLOFF}
  s_add_u32 s27, s27, {ST}
  v_lshl_add_u32 v4, v7, 7, v3         ; dl*128 + g*32
  v_mov_b32 v5, 0x7ff00000
  v_cmp_le_u32 vcc, 14, v7
  s_nop 1
  v_cndmask_b32 v4, v4, v5, vcc
  buffer_load_dwordx4 v[104:107], v4, {WSR}, s27 offen sc1
  buffer_load_dwordx4 v[108:111], v4, {WSR}, s27 offen offset:16 sc1
  s_waitcnt vmcnt(0)''')
        for sh in (8, 4, 2, 1):
            for k in range(8):
                e(f'  v_add_f32 v{104+k}, v{104+k}, v{104+k} row_ror:{sh} row_mask:0xf bank_mask:0xf')
        e(f'  s_mov_b32 s24, {f32bits(1.0/448)}\n  s_mov_b32 s25, {f32bits(1e-5)}')
        for r in range(4):
            su, sq = 104 + 2*r, 105 + 2*r
            e(f'''
  v_mul_f32 v{su}, s24, v{su}
  v_mul_f32 v{sq}, s24, v{sq}
  v_fma_f32 v{sq}, -v{su}, v{su}, v{sq}
  v_max_f32 v{sq}, 0, v{sq}
  v_add_f32 v8, s25, v{sq}
  v_rsq_f32 v8, v8
  s_nop 0
  v_mul_f32 v9, v8, v8
  v_fma_f32 v9, v9, v{sq}, s25
  v_rsq_f32 v9, v9
  s_nop 0
  v_mul_f32 v{sq}, v8, v9
  v_sub_f32 v{96+r}, v{96+r}, v{su}
  v_sub_f32 v{100+r}, v{100+r}, v{su}
  v_mul_f32 v{96+r}, v{96+r}, v{sq}
  v_mul_f32 v{100+r}, v{100+r}, v{sq}''')
        e(f'''
  v_cvt_pk_bf16_f32 v16, v96, v97
  v_cvt_pk_bf16_f32 v17, v98, v99
  v_cvt_pk_bf16_f32 v18, v100, v101
  v_cvt_pk_bf16_f32 v19, v102, v103
  v_permlane16_swap_b32 v16, v18
  v_permlane16_swap_b32 v17, v19
  s_lshl_b32 s24, s{sDBLK}, 1
  s_add_u32 s24, s24, s31
  s_lshl_b32 s24, s24, 7
  s_add_u32 s24, s24, s30
  s_lshl_b32 s24, s24, 10
  s_add_u32 s24, s24, s{sLOFF}
  s_add_u32 s24, s24, {HT}
  buffer_store_dwordx4 v[16:19], v2, {WSR}, s24 offen sc1''')

    def b_prefetch(self, which):
        e = self.e
        nks = 16 if which == 1 else 14
        rowb = F*2 if which == 1 else S*2
        Wf = lambda ks, tl: 128 + (ks*2 + tl)*4
        if which == 1: self.srd(AR, P_W1, S*F*2)
        else: self.srd(AR, P_W2, F*S*2)
        e(f'''
  v_lshrrev_b32 v3, 3, v1              ; row8
  v_and_b32 v4, 7, v1
  v_bfe_u32 v5, v3, 1, 1
  v_lshlrev_b32 v5, 2, v5
  v_xor_b32 v4, v4, v5                 ; c
  v_mul_u32_u24 v5, {rowb}, v3
  v_lshl_add_u32 v8, v4, 4, v5
  s_mul_i32 s24, s{sW}, {16*nks*rowb}
  s_mul_i32 s25, s{sSBLK}, {112 if which == 1 else 128}
  s_add_u32 s24, s24, s25
  s_lshl_b32 s26, s{sW}, 14
  v_lshrrev_b32 v3, 4, v1              ; G
  v_bfe_u32 v4, v1, 2, 2               ; r
  v_lshrrev_b32 v5, 1, v3              ; G>>1
  v_lshl_add_u32 v5, v5, 3, v4         ; row = 8(G>>1)+r
  v_lshlrev_b32 v5, 7, v5
  v_and_b32 v6, 1, v1
  v_lshl_add_u32 v5, v6, 3, v5
  v_bfe_u32 v6, v1, 1, 1               ; cc>>1
  v_and_b32 v7, 1, v3
  v_lshl_add_u32 v6, v7, 1, v6         ; 2(G&1) + (cc>>1)
  v_lshl_add_u32 v5, v6, 4, v5
  v_add_u32 v5, s26, v5
  v_lshrrev_b32 v6, 1, v4              ; r>>1
  v_lshl_add_u32 v24, v6, 6, v5        ; tl=0: 4*(0^(r>>1))*16
  v_xor_b32 v6, 1, v6
  v_lshl_add_u32 v25, v6, 6, v5''')
        for rnd in range(2):
            k0 = 8*rnd; k1 = min(nks, 8*rnd + 8)
            for n in range((k1 - k0)*2):
                e(f'''
  s_add_u32 m0, s26, {n*1024}
  s_add_u32 s27, s24, {(k0*16 + n*8)*rowb}
  buffer_load_dwordx4 v8, {AR}, s27 offen lds''')
            e('  s_waitcnt vmcnt(0)')
            for ks in range(k0, k1):
                for tl in range(2):
                    r = Wf(ks, tl); o = (ks - k0)*2048
                    e(f'  ds_read_b64_tr_b16 v[{r}:{r+1}], v{24+tl} offset:{o}\n  ds_read_b64_tr_b16 v[{r+2}:{r+3}], v{24+tl} offset:{o+512}')
                if ks % 2 == 1: e('  s_waitcnt lgkmcnt(0)')
            e('  s_waitcnt lgkmcnt(0)')

    def b_main(self, which):
        e = self.e
        nks = 16 if which == 1 else 14
        Wf = lambda ks, tl: 128 + (ks*2 + tl)*4
        acc = lambda a, b: 64 + (a*2 + b)*16
        NB = 14
        Af = lambda n: 8 + 4*(n % NB)
        e(f'''
  v_and_b32 v3, 3, v1
  v_mul_u32_u24 v3, 7, v3
  v_add_u32 v3, s{sDBLK}, v3
  v_lshlrev_b32 v3, 3, v3
  v_add_u32 v3, s{sW}, v3
  v_lshlrev_b32 v3, 7, v3
  s_add_u32 s32, s{sPH}, {3 if which == 1 else 4}''')
        if which == 1:
            e(f'''
  s_mul_i32 s24, s{sSBLK}, 112
  s_min_u32 s25, s{sW}, 6
  s_lshl_b32 s25, s25, 4
  s_add_u32 s24, s24, s25
  s_load_dwordx4 s[40:43], s[{P_B1}:{P_B1+1}], s24''')
        else:
            self.srd(BR, P_B2, S*2)
            e(f'''
  s_lshl_b32 s24, s{sSBLK}, 7
  v_lshlrev_b32 v5, 1, v1
  buffer_load_ushort v240, v5, {BR}, s24 offen''')
        self.poll(3, 32)
        NT = 128 if which == 1 else 112
        e(f'''
  s_lshl_b32 s24, s{sDBLK}, 1
  s_mul_i32 s24, s24, {NT}
  s_mul_i32 s25, s{sW}, {nks}
  s_add_u32 s24, s24, s25
  s_lshl_b32 s24, s24, 10
  s_add_u32 s24, s24, s{sLOFF}
  s_add_u32 s24, s24, {HT if which == 1 else UF}
  s_add_u32 s25, s24, {NT*1024}''')
        nfr = 2*nks
        def ld(n):
            ks, dt = n // 2, n % 2
            r = Af(n)
            e(f'  buffer_load_dwordx4 v[{r}:{r+3}], v2, {WSR}, s{24+dt} offen offset:{(ks % 4)*1024} sc1')
            if dt == 1 and ks % 4 == 3:
                e('  s_add_u32 s24, s24, 4096\n  s_add_u32 s25, s25, 4096')
        issued = 0
        while issued < min(NB, nfr):
            ld(issued); issued += 1
        for ks in range(nks):
            outstanding_allowed = issued - (2*ks + 2)
            e(f'  s_waitcnt vmcnt({outstanding_allowed})')
            for dt in range(2):
                x = Af(2*ks + dt)
                for tl in range(2):
                    w = Wf(ks, tl)
                    if which == 1:
                        c = acc(tl, dt)
                        C = '0' if ks == 0 else f'v[{c}:{c+15}]'
                        e(f'  v_mfma_f32_32x32x16_bf16 v[{c}:{c+15}], v[{w}:{w+3}], v[{x}:{x+3}], {C}')
                    else:
                        c = acc(dt, tl)
                        C = '0' if ks == 0 else f'v[{c}:{c+15}]'
                        e(f'  v_mfma_f32_32x32x16_bf16 v[{c}:{c+15}], v[{x}:{x+3}], v[{w}:{w+3}], {C}')
            for _ in range(2):
                if issued < nfr:
                    ld(issued); issued += 1
        e(f'''
  s_barrier
  v_and_b32 v3, 31, v1
  v_mul_u32_u24 v3, 272, v3
  v_lshrrev_b32 v4, 5, v1
  v_lshl_add_u32 v3, v4, 4, v3
  s_mul_i32 s24, s{sW}, 17408
  v_add_u32 v3, s24, v3''')
        for a in range(2):
            for b in range(2):
                c = acc(a, b)
                for q in range(4):
                    e(f'  ds_write_b128 v3, v[{c+4*q}:{c+4*q+3}] offset:{b*32*272 + a*128 + q*32}')
        e(f'''
  s_waitcnt lgkmcnt(0)
  s_barrier
  v_mul_u32_u24 v3, 272, v1
  s_lshl_b32 s24, s{sW}, 5
  v_add_u32 v3, s24, v3''')
        e('  v_add_u32 v5, 69632, v3')
        for p in range(8):
            r = 64 + p*8
            base = 3 if p < 4 else 5
            o = (p % 4)*17408
            e(f'  ds_read_b128 v[{r}:{r+3}], v{base} offset:{o}\n  ds_read_b128 v[{r+4}:{r+7}], v{base} offset:{o+16}')
        if which == 2:
            e(f'  v_add_u32 v6, {RES}, v3\n  ds_read_b128 v[132:135], v6\n  ds_read_b128 v[136:139], v6 offset:16')
        e('  s_waitcnt lgkmcnt(0)')
        for p in range(1, 8):
            for k in range(8):
                e(f'  v_add_f32 v{64+k}, v{64+k}, v{64+p*8+k}')
        if which == 1:
            c0 = -2.0*LOG2E*math.sqrt(2.0/math.pi); c1 = c0*0.044715
            e(f'  s_mov_b32 s24, {f32bits(c0)}\n  s_mov_b32 s25, {f32bits(c1)}')
            for k in range(8):
                src = 40 + k//2
                if k % 2 == 0: e(f'  s_lshl_b32 s26, s{src}, 16')
                else: e(f'  s_and_b32 s26, s{src}, 0xffff0000')
                x = 64 + k
                e(f'''
  v_add_f32 v{x}, s26, v{x}
  v_mul_f32 v9, v{x}, v{x}
  v_mov_b32 v10, s24
  v_fmac_f32 v10, s25, v9
  v_mul_f32 v10, v10, v{x}
  v_exp_f32 v10, v10
  s_nop 0
  v_add_f32 v10, 1.0, v10
  v_rcp_f32 v10, v10
  s_nop 0
  v_mul_f32 v{x}, v{x}, v10''')
            Ls = self.a.newlabel('L_b1')
            e(f'''
  v_cvt_pk_bf16_f32 v16, v64, v65
  v_cvt_pk_bf16_f32 v17, v66, v67
  v_cvt_pk_bf16_f32 v18, v68, v69
  v_cvt_pk_bf16_f32 v19, v70, v71
  s_mul_i32 s24, s{sSBLK}, 7
  s_add_u32 s24, s24, s{sW}
  s_lshr_b32 s25, s24, 1               ; kt
  s_and_b32 s24, s24, 1                ; g
  s_lshl_b32 s26, s{sDBLK}, 1
  s_mul_i32 s26, s26, 112
  s_add_u32 s26, s26, s25
  s_lshl_b32 s26, s26, 10
  s_lshl_b32 s24, s24, 9
  s_add_u32 s26, s26, s24
  s_add_u32 s26, s26, s{sLOFF}
  s_add_u32 s26, s26, {UF}
  v_and_b32 v3, 31, v1
  v_lshlrev_b32 v3, 4, v3
  v_lshrrev_b32 v4, 5, v1
  v_mul_u32_u24 v4, {112*1024}, v4
  v_add_u32 v3, v3, v4
  s_cmp_eq_u32 s{sW}, 7
  s_cbranch_scc1 {Ls}
  buffer_store_dwordx4 v[16:19], v3, {WSR}, s26 offen sc1
{Ls}:''')
        else:
            e('  v_lshlrev_b32 v4, 16, v240')
            for k in range(8):
                e(f'  v_add_f32 v{64+k}, v{64+k}, v4\n  v_add_f32 v{64+k}, v{64+k}, v{132+k}')
            e(f'''
  ds_write_b128 v6, v[64:67]
  ds_write_b128 v6, v[68:71] offset:16
  v_cvt_pk_bf16_f32 v16, v64, v65
  v_cvt_pk_bf16_f32 v17, v66, v67
  v_cvt_pk_bf16_f32 v18, v68, v69
  v_cvt_pk_bf16_f32 v19, v70, v71
  s_add_u32 s24, s{P_WS}, {ACT0 + X2}
  s_addc_u32 s25, s{P_WS+1}, 0
  s_cmp_eq_u32 s{sLAY}, 0
  s_cselect_b32 s16, s24, s{P_OUT}
  s_cselect_b32 s17, s25, s{P_OUT+1}
  s_mov_b32 s18, {S*D*2}
  s_mov_b32 s19, 0x20000
  s_mul_i32 s24, s{sSBLK}, {64*896}
  s_lshl_b32 s25, s{sDBLK}, 7
  s_add_u32 s24, s24, s25
  s_lshl_b32 s25, s{sW}, 4
  s_add_u32 s24, s24, s25
  v_mul_u32_u24 v5, 896, v1
  buffer_store_dwordx4 v[16:19], v5, {BR}, s24 offen sc1''')

    def build(self):
        e = self.e
        self.prologue()
        self.stamp(0)
        e('L_layer:')
        self.qkv_prefetch()
        self.stamp(1)
        self.qkv_main()
        self.stamp(2)
        self.signal(1)
        self.handshake()
        self.stamp(3)
        if self.nph >= 2:
            self.att()
            self.stamp(4)
            self.signal(2)
            self.stamp(5)
        e(f'  s_cmp_ge_u32 s{sM}, 28\n  s_cbranch_scc1 L_skip')
        if self.nph >= 3:
            self.wo_prefetch(); self.stamp(6); self.wo_main(); self.stamp(7); self.signal(3)
        if self.nph >= 4:
            self.b_prefetch(1); self.stamp(8); self.b_main(1); self.stamp(9); self.signal(4)
        if self.nph >= 5:
            self.b_prefetch(2); self.stamp(10); self.b_main(2); self.stamp(11); self.signal(5)
        e('L_skip:')
        self.stamp(12)
        if self.nph > 5:
            e(f'''
  s_add_u32 s{sLAY}, s{sLAY}, 1
  s_add_u32 s{sPH}, s{sPH}, 5
  s_add_u32 s{sLOFF}, s{sLOFF}, {LSTRIDE}
  s_cmp_lt_u32 s{sLAY}, 2
  s_cbranch_scc1 L_layer''')
        e('L_end:\n  s_endpgm')
        body = self.a.text()
        head = open(f'cdna_kernels/{NAME}.s.ref').read().split('; Override launch')[0]
        out = head + f'''; @launch grid=(256,1,1) block=(512,1,1) lds={LDS_TOTAL}
.amdgcn_target "amdgcn-amd-amdhsa--gfx950"
.text
.globl {NAME}_kernel
.p2align 8
.type {NAME}_kernel,@function
{NAME}_kernel:
''' + body + f'''.section .rodata,"a"
.p2align 6
.amdhsa_kernel {NAME}_kernel
  .amdhsa_next_free_vgpr 256
  .amdhsa_next_free_sgpr 102
  .amdhsa_accum_offset 256
  .amdhsa_group_segment_fixed_size 0
  .amdhsa_kernarg_size 88
  .amdhsa_user_sgpr_count 2
  .amdhsa_user_sgpr_kernarg_segment_ptr 1
  .amdhsa_system_sgpr_workgroup_id_x 1
.end_amdhsa_kernel
'''
        return out

if __name__ == '__main__':
    import argparse
    ap = argparse.ArgumentParser()
    ap.add_argument('--nph', type=int, default=10)
    ap.add_argument('--timing', action='store_true')
    ap.add_argument('-o', default=f'cdna_kernels/{NAME}.s')
    args = ap.parse_args()
    open(args.o, 'w').write(Gen(args.nph, args.timing).build())
    print('wrote', args.o)
```

```python
import sys, math, struct
sys.path.insert(0, 'gen')
from asmlib import Asm

NAME = 'interleave_layers__sliding_block__mixer_token_mlp__prompt'
S, D, H, DH, F = 2048, 448, 16, 28, 1792

GF_OFF = 0; XF_OFF = 0x8000; LF_OFF = 0xC000; TS_OFF = 0x40000
WQT = 0x100000
WXT = 0x300000; WXT_STRIDE = 0x300000
W1T, W2T, WOT = 0, 0x100000, 0x200000
ACT0 = 0x2000000; LSTRIDE = 0x1000000
QF = 0x000000; KF = 0x200000; VF = 0x400000; OF = 0x600000
ST = 0x800000; HT = 0x900000; UF = 0xB00000; X2 = 0xD00000
WS_SIZE = 0x10000000

LDS_TOTAL = 163840
RES = 146432
XA, XB = 92160, 0
QL = 57344
KT, VT = 0, 24576
WOL = 65536
VSC = 149504 - 0
VSC = 92160 + 57344
XA = 88064
VSC = 88064 + 57344
VSC = 57344 + 0

sWG, sX, sM, sW, sLAY = 2, 4, 5, 6, 7
WSR = 's[8:11]'; AR = 's[12:15]'; BR = 's[16:19]'; DBGR = 's[20:23]'
sLOFF, sPH, sSBLK, sDBLK, sMQ, sSPIN, sFAST, sWX = 48, 49, 50, 51, 52, 53, 54, 55
P_X, P_WQKV, P_WO, P_W1, P_B1, P_W2, P_B2 = 64, 66, 68, 72, 74, 76, 78
P_OUT, P_DBG, P_WS = 80, 82, 84
LOG2E = 1.4426950408889634
STAMP_NAMES = {0:'start',1:'W dma landed',2:'W regs+colsum',3:'x flags',4:'x ks0-2 landed',5:'qkv mfma done',6:'qkv stores',7:'qkv signal',8:'pre-att',9:'att poll',10:'kv landed',11:'qk done',12:'att end',13:'att signal',14:'wo poll',15:'wo mfma',16:'stats pub',17:'stats poll',18:'wo end',19:'wo signal',20:'b1 poll',21:'b1 first',22:'b1 mfma',23:'b1 red',24:'b1 end',25:'b1 sig',26:'b2 poll',27:'b2 first',28:'b2 mfma',29:'b2 red',30:'b2 end',31:'b2 sig'}
def f32bits(x): return struct.unpack('<I', struct.pack('<f', x))[0]

XA = 86016
VSC = 65536

class Gen:
    def __init__(self, timing=False, opts=None):
        self.a = Asm(); self.timing = timing; self.o = opts or {}
    def e(self, t): self.a.e(t)
    def L(self, b='L'): return self.a.newlabel(b)

    def srd(self, r, ptr, size, off=None):
        lo = int(r[2:r.index(':')])
        if off is None: self.e(f'  s_mov_b32 s{lo}, s{ptr}\n  s_mov_b32 s{lo+1}, s{ptr+1}')
        else: self.e(f'  s_add_u32 s{lo}, s{ptr}, {off}\n  s_addc_u32 s{lo+1}, s{ptr+1}, 0')
        self.e(f'  s_mov_b32 s{lo+2}, {size}\n  s_mov_b32 s{lo+3}, 0x20000')

    def signal_g(self, ph, vm=0):
        L = self.L('L_sig')
        self.e(f'''
  s_waitcnt vmcnt({vm}) lgkmcnt(0)
  s_barrier
  s_cmp_lg_u32 s{sW}, 0
  s_cbranch_scc1 {L}
  s_add_u32 s24, s{sPH}, {ph}
  s_lshl_b32 s25, s{sWG}, 7
  v_mov_b32 v4, s24
  s_mov_b64 exec, 1
  buffer_store_dword v4, off, {WSR}, s25 sc1
  s_mov_b64 exec, -1
{L}:''')
    def lstore(self, lines):
        La = self.L('L_ls'); Lb = self.L('L_ls')
        self.e(f'  s_cmp_eq_u32 s{sFAST}, 0\n  s_cbranch_scc1 {La}')
        for l in lines: self.e(l)
        self.e(f'  s_branch {Lb}\n{La}:')
        for l in lines: self.e(l + ' sc1' if 'buffer_store' in l else l)
        self.e(f'{Lb}:')
    def local_flag_store(self, vdata, soff):
        self.lstore([f'  buffer_store_dword v{vdata}, off, {WSR}, s{soff}'])
    def signal_l(self, ph, vm=0, pre_barrier=None):
        L = self.L('L_sig')
        self.e(f'  s_waitcnt vmcnt({vm}) lgkmcnt(0)\n  s_barrier')
        if pre_barrier: pre_barrier()
        self.e(f'''
  s_cmp_lg_u32 s{sW}, 0
  s_cbranch_scc1 {L}
  s_add_u32 s24, s{sPH}, {ph}
  s_lshl_b32 s25, s{sX}, 7
  s_lshl_b32 s26, s{sM}, 2
  s_add_u32 s25, s25, s26
  s_add_u32 s25, s25, {LF_OFF}
  v_mov_b32 v4, s24
  s_mov_b64 exec, 1''')
        self.local_flag_store(4, 25)
        self.e(f'  s_mov_b64 exec, -1\n{L}:')
    def poll(self, vaddr, tgt, vtmp=4):
        L = self.L('L_poll'); Ld = self.L('L_polld')
        if isinstance(tgt, int): tgt = f's{tgt}'
        self.e(f'''
  s_mov_b32 s{sSPIN}, 0x400000
{L}:
  buffer_load_dword v{vtmp}, v{vaddr}, {WSR}, 0 offen sc1
  s_waitcnt vmcnt(0)
  v_cmp_gt_u32 vcc, {tgt}, v{vtmp}
  s_cbranch_vccz {Ld}
  s_sub_u32 s{sSPIN}, s{sSPIN}, 1
  s_cmp_lg_u32 s{sSPIN}, 0
  s_cbranch_scc1 {L}
{Ld}:''')
    def wgpoll(self, setup, tgt):
        L = self.L('L_wp')
        self.e(f'  s_cmp_lg_u32 s{sW}, 0\n  s_cbranch_scc1 {L}')
        self.e(setup)
        self.poll(3, tgt)
        self.e(f'{L}:\n  s_barrier')
    def stamp(self, idx):
        if not self.timing: return
        self.e(f'''
  s_memrealtime s[46:47]
  s_waitcnt lgkmcnt(0)
  s_lshl_b32 s45, s{sLAY}, 5
  s_add_u32 s45, s45, {idx}
  s_mov_b32 m0, s45
  v_writelane_b32 v0, s46, m0''')
    def stamp_flush(self):
        if not self.timing: return
        self.e(f'''
  s_lshl_b32 s45, s{sWG}, 3
  s_add_u32 s45, s45, s{sW}
  s_lshl_b32 s45, s45, 8
  s_add_u32 s45, s45, {TS_OFF}
  v_lshlrev_b32 v3, 2, v1
  buffer_store_dword v0, v3, {WSR}, s45 offen''')

    def prologue(self):
        e = self.e
        e(f'''
  s_cmp_ge_u32 s2, 256
  s_cbranch_scc1 L_end
  s_memrealtime s[86:87]
  s_load_dwordx16 s[64:79], s[0:1], 0
  s_load_dwordx4 s[80:83], s[0:1], 64
  s_load_dwordx2 s[84:85], s[0:1], 80
  s_and_b32 s{sX}, s2, 7
  s_lshr_b32 s{sM}, s2, 3
  v_lshrrev_b32 v3, 6, v0
  v_and_b32 v1, 63, v0
  v_readfirstlane_b32 s{sW}, v3
  v_lshlrev_b32 v2, 4, v1
  s_mul_i32 s24, s{sM}, 37
  s_lshr_b32 s{sMQ}, s24, 8
  s_mul_i32 s24, s{sMQ}, 7
  s_sub_u32 s{sDBLK}, s{sM}, s24
  s_lshl_b32 s24, s{sX}, 2
  s_add_u32 s{sSBLK}, s24, s{sMQ}
  s_mov_b32 s{sLAY}, 0
  s_mov_b32 s{sPH}, 0
  s_mov_b32 s{sLOFF}, {ACT0}
  s_mov_b32 s{sFAST}, 0
  s_mul_i32 s{sWX}, s{sX}, {WXT_STRIDE}
  s_add_u32 s{sWX}, s{sWX}, {WXT}
  v_mov_b32 v0, 0
  s_waitcnt lgkmcnt(0)
  v_writelane_b32 v0, s86, 3''')
        self.srd(WSR, P_WS, WS_SIZE)
        self.srd(DBGR, P_DBG, 256)

    def init_flags(self):
        e = self.e
        L1 = self.L('L_z'); L2 = self.L('L_z')
        e(f'''
  v_mov_b32 v4, 0
  s_cmp_ge_u32 s{sM}, 28
  s_cbranch_scc1 {L1}
  s_and_b32 s24, s{sW}, 3
  s_lshl_b32 s25, s{sSBLK}, 2
  s_add_u32 s24, s24, s25
  s_lshl_b32 s24, s24, 4
  s_lshr_b32 s25, s{sW}, 2
  s_add_u32 s24, s24, s25
  s_lshl_b32 s25, s{sDBLK}, 1
  s_add_u32 s24, s24, s25
  s_lshl_b32 s24, s24, 2
  s_add_u32 s24, s24, {XF_OFF}
  v_lshlrev_b32 v5, 13, v1
  v_add_u32 v5, s24, v5
  s_mov_b64 exec, 3
  buffer_store_dword v4, v5, {WSR}, 0 offen sc1
  s_mov_b64 exec, -1
{L1}:
  s_cmp_lg_u32 s{sW}, 0
  s_cbranch_scc1 {L2}
  s_lshl_b32 s25, s{sWG}, 7
  s_lshl_b32 s26, s{sX}, 7
  s_lshl_b32 s27, s{sM}, 2
  s_add_u32 s26, s26, s27
  s_add_u32 s26, s26, {LF_OFF}
  s_mov_b64 exec, 1
  buffer_store_dword v4, off, {WSR}, s25 sc1
  buffer_store_dword v4, off, {WSR}, s26 sc1
  s_mov_b64 exec, -1
{L2}:''')
    def publish_init(self):
        L3 = self.L('L_z')
        self.e(f'''
  s_cmp_lg_u32 s{sW}, 0
  s_cbranch_scc1 {L3}
  s_getreg_b32 s24, hwreg(HW_REG_XCC_ID)
  s_and_b32 s24, s24, 15
  s_or_b32 s24, s24, 0x80
  v_mov_b32 v4, s24
  s_mov_b64 exec, 1
  buffer_store_byte v4, off, {DBGR}, s{sWG} sc1
  s_mov_b64 exec, -1
{L3}:''')
    def handshake(self, ldsaddr):
        L = self.L('L_hs'); Ld = self.L('L_hsd'); Ls = self.L('L_hss')
        self.e(f'''
  s_cmp_lg_u32 s{sW}, 0
  s_cbranch_scc1 {Ls}
  v_lshlrev_b32 v5, 2, v1
  s_mov_b32 s{sSPIN}, 0x400000
  s_mov_b32 s24, 0x80808080
{L}:
  buffer_load_dword v4, v5, {DBGR}, 0 offen sc1
  s_waitcnt vmcnt(0)
  v_and_b32 v6, s24, v4
  v_cmp_ne_u32 vcc, s24, v6
  s_cbranch_vccz {Ld}
  s_sub_u32 s{sSPIN}, s{sSPIN}, 1
  s_cmp_lg_u32 s{sSPIN}, 0
  s_cbranch_scc1 {L}
{Ld}:
  v_readlane_b32 s24, v4, 0
  v_readlane_b32 s25, v4, 1
  v_and_b32 v6, 1, v1
  v_cmp_eq_u32 vcc, 0, v6
  v_mov_b32 v7, s25
  v_mov_b32 v6, s24
  v_cndmask_b32 v6, v7, v6, vcc
  v_cmp_ne_u32 vcc, v6, v4
  s_cmp_eq_u64 vcc, 0
  s_cselect_b32 s24, {0 if self.o.get('slow') else 1}, 0
  v_mov_b32 v4, s24
  v_mov_b32 v5, {ldsaddr}
  ds_write_b32 v5, v4
{Ls}:''')
    def handshake_read(self, ldsaddr):
        self.e(f'''
  v_mov_b32 v5, {ldsaddr}
  ds_read_b32 v4, v5
  s_waitcnt lgkmcnt(0)
  v_readfirstlane_b32 s{sFAST}, v4''')
    def res_load(self):
        L4 = self.L('L_res')
        self.srd(BR, P_X, S*D*2)
        self.e(f'''
  s_mul_i32 s24, s{sSBLK}, {64*896}
  s_lshl_b32 s25, s{sDBLK}, 7
  s_add_u32 s24, s24, s25
  s_lshl_b32 s25, s{sW}, 4
  s_add_u32 s24, s24, s25
  s_cmp_ge_u32 s{sM}, 28
  s_cselect_b32 s24, 0, s24
  v_mul_u32_u24 v5, 896, v1
  buffer_load_dwordx4 v[32:35], v5, {BR}, s24 offen''')
    def res_store(self):
        self.e(f'''
  v_mul_u32_u24 v6, 272, v1
  s_lshl_b32 s25, s{sW}, 5
  s_add_u32 s25, s25, {RES}
  v_add_u32 v6, s25, v6
  v_lshlrev_b32 v12, 16, v32
  v_and_b32 v13, 0xffff0000, v32
  v_lshlrev_b32 v14, 16, v33
  v_and_b32 v15, 0xffff0000, v33
  v_lshlrev_b32 v16, 16, v34
  v_and_b32 v17, 0xffff0000, v34
  v_lshlrev_b32 v18, 16, v35
  v_and_b32 v19, 0xffff0000, v35
  ds_write_b128 v6, v[12:15]
  ds_write_b128 v6, v[16:19] offset:16''')

    Wq = staticmethod(lambda ks, tt: 88 + (ks*3 + tt)*4)
    def qkv_w0_issue(self):
        e = self.e
        self.srd(AR, P_WQKV, D*3*D*2)
        for p in range(3):
            e(f'''
  v_add_u32 v3, {p*64}, v1
  v_mul_u32_u24 v4, 171, v3
  v_lshrrev_b32 v4, 11, v4
  v_mul_u32_u24 v5, 12, v4
  v_sub_u32 v5, v3, v5
  v_lshrrev_b32 v6, 2, v5
  v_and_b32 v5, 3, v5
  v_bfe_u32 v7, v4, 3, 1
  v_lshlrev_b32 v7, 1, v7
  v_xor_b32 v5, v5, v7
  v_mul_u32_u24 v4, 2688, v4
  v_mul_u32_u24 v6, 896, v6
  v_lshlrev_b32 v5, 4, v5
  v_add3_u32 v{8+p}, v4, v5, v6''')
        Lskip = self.L('L_qw')
        e(f'''
  s_and_b32 s24, s{sM}, 15
  s_mul_i32 s24, s24, 56
  s_mul_i32 s25, s{sW}, {16*2688}
  s_add_u32 s24, s24, s25
  s_mul_i32 s26, s{sW}, 3072''')
        for gi in range(4):
            if gi == 3: e(f'  s_cmp_ge_u32 s{sW}, 4\n  s_cbranch_scc1 {Lskip}')
            for p in range(3):
                e(f'''
  s_add_u32 m0, s26, {gi*8*3072 + p*1024}
  s_add_u32 s27, s24, {gi*8*16*2688}
  buffer_load_dwordx4 v{8+p}, {AR}, s27 offen lds''')
        e(f'{Lskip}:')
    def qkv_w0_finish(self):
        e = self.e; Wf = self.Wq
        e(f'''
  v_lshrrev_b32 v3, 4, v1
  v_bfe_u32 v4, v1, 2, 2
  v_lshl_add_u32 v4, v3, 3, v4
  v_mul_u32_u24 v4, 192, v4
  v_and_b32 v5, 1, v1
  v_lshl_add_u32 v4, v5, 3, v4
  v_bfe_u32 v5, v1, 1, 1
  v_and_b32 v6, 1, v3
  v_lshlrev_b32 v6, 1, v6
  v_xor_b32 v5, v5, v6
  v_xor_b32 v6, 2, v5
  v_lshl_add_u32 v24, v5, 4, v4
  v_lshl_add_u32 v25, v6, 4, v4
  s_and_b32 s24, s{sW}, 1
  s_cmp_eq_u32 s24, 0
  s_cselect_b64 vcc, -1, 0
  s_lshl_b32 s25, s24, 6
  v_cndmask_b32 v26, v25, v24, vcc
  v_add_u32 v26, 128, v26
  v_add_u32 v24, s25, v24
  v_add_u32 v25, s25, v25''')
        for ks in range(14):
            if ks == 8: e('  v_add_u32 v24, 49152, v24\n  v_add_u32 v25, 49152, v25\n  v_add_u32 v26, 49152, v26')
            o = (ks % 8)*6144
            for tt in range(3):
                r = Wf(ks, tt)
                e(f'  ds_read_b64_tr_b16 v[{r}:{r+1}], v{24+tt} offset:{o}\n  ds_read_b64_tr_b16 v[{r+2}:{r+3}], v{24+tt} offset:{o+768}')
            if ks % 2 == 1: e('  s_waitcnt lgkmcnt(6)')
        e('  s_waitcnt lgkmcnt(0)\n  s_barrier')
        e('''
  v_and_b32 v3, 15, v1
  v_cmp_eq_u32 vcc, 12, v3
  v_mov_b32 v4, 0x3f803f80''')
        for ks in range(14):
            r = Wf(ks, 1)
            for k in range(4): e(f'  v_cndmask_b32 v{r+k}, v{r+k}, v4, vcc')
    def qkv_colsum(self):
        e = self.e; Wf = self.Wq
        e('''
  v_mov_b32 v16, 0x3f803f80
  v_mov_b32 v17, 0x3f803f80
  v_mov_b32 v18, 0x3f803f80
  v_mov_b32 v19, 0x3f803f80''')
        for ks in range(14):
            for tt in range(3):
                r = Wf(ks, tt); c = 52 + tt*4
                C = '0' if ks == 0 else f'v[{c}:{c+3}]'
                if tt < 2: e(f'  v_mfma_f32_16x16x32_bf16 v[{c}:{c+3}], v[{r}:{r+3}], v[16:19], {C}')
                else: e(f'  v_mfma_f32_16x16x32_bf16 v[{c}:{c+3}], v[16:19], v[{r}:{r+3}], {C}')
    def qkv_w0_save(self):
        e = self.e
        L = self.L('L_qs')
        e(f'''
  s_cmp_ge_u32 s{sW}, 2
  s_cbranch_scc1 {L}
  s_cmp_ge_u32 s{sM}, 16
  s_cbranch_scc1 {L}
  s_cmp_lg_u32 s{sX}, 0
  s_cbranch_scc1 {L}
  s_lshl_b32 s24, s{sM}, 1
  s_add_u32 s24, s24, s{sW}
  s_mul_i32 s24, s24, {45*1024}
  s_add_u32 s24, s24, {WQT}''')
        regs = [88 + 4*n for n in range(42)] + [52, 56, 60]
        for n, r in enumerate(regs):
            e(f'  buffer_store_dwordx4 v[{r}:{r+3}], v2, {WSR}, s24 offen offset:{(n % 4)*1024} sc1')
            if n % 4 == 3: e('  s_add_u32 s24, s24, 4096')
        e(f'{L}:')
    def qkv_w1_issue(self):
        e = self.e
        L = self.L('L_qw1')
        e(f'''
  s_and_b32 s24, s{sM}, 15
  s_mul_i32 s24, s24, {90*1024}
  s_add_u32 s24, s24, {WQT}
  s_and_b32 s25, s{sW}, 1
  s_mul_i32 s27, s25, {45*1024}
  s_add_u32 s24, s24, s27
  s_mul_i32 s26, s25, {42*1024}
  s_add_u32 s28, s24, {42*1024}
  buffer_load_dwordx4 v[52:55], v2, {WSR}, s28 offen sc1
  buffer_load_dwordx4 v[56:59], v2, {WSR}, s28 offen offset:1024 sc1
  buffer_load_dwordx4 v[60:63], v2, {WSR}, s28 offen offset:2048 sc1
  s_lshr_b32 s25, s{sW}, 1             ; i = 0..3 : frags n = i, i+4, ...
  s_lshl_b32 s25, s25, 10
  s_add_u32 s24, s24, s25
  s_add_u32 s26, s26, s25''')
        for n in range(11):
            if n == 10: e(f'  s_cmp_ge_u32 s{sW}, 4\n  s_cbranch_scc1 {L}')
            e(f'''
  s_add_u32 m0, s26, {n*4096}
  s_add_u32 s27, s24, {n*4096}
  buffer_load_dwordx4 v2, {WSR}, s27 offen sc1 lds''')
        e(f'{L}:')
    def qkv_w1_finish(self):
        e = self.e
        e(f'''
  s_and_b32 s24, s{sW}, 1
  s_mul_i32 s24, s24, {42*1024}
  v_add_u32 v24, s24, v2''')
        regs = [88 + 4*n for n in range(42)]
        for n, r in enumerate(regs):
            e(f'  ds_read_b128 v[{r}:{r+3}], v24 offset:{n*1024}')
            if n % 8 == 7: e('  s_waitcnt lgkmcnt(6)')
        e('  s_waitcnt lgkmcnt(0)\n  s_barrier')
    def pi_of(self, dst, src_hi, tmp):
        self.e(f'  v_lshlrev_b32 v{tmp}, 1, v{src_hi}\n  v_mov_b32 v{dst}, 0x78\n  v_lshrrev_b32 v{dst}, v{tmp}, v{dst}\n  v_and_b32 v{dst}, 3, v{dst}')
    def qkv_x_setup(self, layer):
        e = self.e
        if layer == 0:
            self.srd(AR, P_X, S*D*2)
            e('  v_lshrrev_b32 v3, 2, v1\n  v_lshrrev_b32 v4, 2, v3')
            self.pi_of(5, 4, 6)
            e('''
  v_and_b32 v6, 3, v1
  v_xor_b32 v5, v5, v6
  v_mul_u32_u24 v3, 896, v3
  v_lshl_add_u32 v27, v5, 4, v3
  s_mov_b32 s38, 64''')
        else:
            self.srd(AR, P_WS, S*D*2, off=ACT0 + X2)
            e('  v_mov_b32 v27, v2\n  s_mov_b32 s38, 1024')
        e(f'''
  s_lshl_b32 s24, s{sX}, 4
  s_lshr_b32 s25, s{sM}, 4
  s_lshl_b32 s25, s25, 3
  s_add_u32 s24, s24, s25
  s_add_u32 s24, s24, s{sW}
  s_mul_i32 s39, s24, 14336''')
    def qkv_x_dma(self, part, layer):
        e = self.e
        base = XA if part == 0 else XB
        fl = 'sc1 ' if layer else ''
        e(f'  s_mul_i32 s26, s{sW}, 7168\n  s_mul_i32 s27, s38, {7*part}\n  s_add_u32 s27, s27, s39')
        for k in range(7):
            e(f'''
  s_add_u32 m0, s26, {base + k*1024}
  s_nop 0
  buffer_load_dwordx4 v27, {AR}, s27 offen {fl}lds
  s_add_u32 s27, s27, s38''')
    def qkv_main(self):
        e = self.e; Wf = self.Wq
        acc = lambda rt, tt: 64 + (rt*3 + tt)*4
        xf = lambda b, rt: 36 + (b*2 + rt)*4
        GR = 32
        e('  v_and_b32 v3, 15, v1\n  v_lshrrev_b32 v4, 2, v3')
        self.pi_of(5, 4, 6)
        e(f'''
  v_lshrrev_b32 v6, 4, v1
  v_xor_b32 v5, v5, v6
  v_lshl_add_u32 v5, v3, 2, v5
  v_lshlrev_b32 v5, 4, v5
  s_lshr_b32 s24, s{sW}, 1
  s_mul_i32 s24, s24, 14336
  v_add_u32 v29, s24, v5
  v_add_u32 v28, {XA}, v29
  s_and_b32 s31, s{sW}, 1
  s_mul_i32 s25, s31, 7168
  v_add_u32 v30, s25, v28
  v_add_u32 v31, s25, v29''')
        def rd(ks):
            b = ks & 1
            for rt in range(2):
                r = xf(b, rt)
                if ks < 7: e(f'  ds_read_b128 v[{r}:{r+3}], v28 offset:{rt*7168 + ks*1024}')
                else: e(f'  ds_read_b128 v[{r}:{r+3}], v29 offset:{XB + rt*7168 + (ks-7)*1024}')
            g = 16 + 4*b
            if ks < 7: e(f'  ds_read_b128 v[{g}:{g+3}], v30 offset:{ks*1024}')
            else: e(f'  ds_read_b128 v[{g}:{g+3}], v31 offset:{XB + (ks-7)*1024}')
        stages = {0: 11, 3: 7, 7: 3, 11: 0}
        for ks in range(14):
            if ks in stages:
                La = self.L('L_sw'); Lb = self.L('L_sw')
                e(f'  s_cmp_eq_u32 s{sLAY}, 0\n  s_cbranch_scc1 {La}\n  s_waitcnt vmcnt({stages[ks]})\n  s_branch {Lb}\n{La}:\n  s_waitcnt vmcnt({stages[ks] + 12})\n{Lb}:\n  s_barrier')
                if ks == 0: self.stamp(4)
                rd(ks)
            if ks + 1 < 14 and (ks + 1) not in stages:
                rd(ks + 1); e('  s_waitcnt lgkmcnt(3)')
            else:
                e('  s_waitcnt lgkmcnt(0)')
            b = ks & 1
            for rt in range(2):
                x = xf(b, rt)
                for tt in range(3):
                    w = Wf(ks, tt); c = acc(rt, tt)
                    C = '0' if ks == 0 else f'v[{c}:{c+3}]'
                    if tt < 2: e(f'  v_mfma_f32_16x16x32_bf16 v[{c}:{c+3}], v[{w}:{w+3}], v[{x}:{x+3}], {C}')
                    else: e(f'  v_mfma_f32_16x16x32_bf16 v[{c}:{c+3}], v[{x}:{x+3}], v[{w}:{w+3}], {C}')
            g = 16 + 4*b
            C = '0' if ks == 0 else f'v[{GR}:{GR+3}]'
            e(f'  v_mfma_f32_16x16x32_bf16 v[{GR}:{GR+3}], v[{g}:{g+3}], v[{g}:{g+3}], {C}')
        self.stamp(5)
        e(f'''
  v_and_b32 v3, 15, v1
  v_and_b32 v4, 3, v3
  v_lshrrev_b32 v5, 2, v3
  v_lshrrev_b32 v6, 4, v1
  v_cmp_eq_u32 s[28:29], 1, v4
  v_cmp_eq_u32 s[32:33], 2, v4
  v_cmp_eq_u32 s[34:35], 3, v4
  v_cmp_eq_u32 s[36:37], v5, v6
  v_cndmask_b32 v7, v{GR}, v{GR+1}, s[28:29]
  v_cndmask_b32 v7, v7, v{GR+2}, s[32:33]
  v_cndmask_b32 v7, v7, v{GR+3}, s[34:35]
  v_cndmask_b32 v7, 0, v7, s[36:37]
  s_cmp_eq_u32 s31, 0
  s_cselect_b64 vcc, -1, 0
  v_cndmask_b32 v8, v{acc(1,1)}, v{acc(0,1)}, vcc
  v_cmp_le_u32 s[28:29], 48, v1
  v_cndmask_b32 v8, 0, v8, s[28:29]
  v_mov_b32 v9, v7
  v_mov_b32 v10, v8
  v_permlane32_swap_b32 v9, v7
  v_permlane32_swap_b32 v10, v8
  v_add_f32 v7, v9, v7
  v_add_f32 v8, v10, v8
  v_mov_b32 v9, v7
  v_mov_b32 v10, v8
  v_permlane16_swap_b32 v9, v7
  v_permlane16_swap_b32 v10, v8
  v_add_f32 v7, v9, v7
  v_add_f32 v8, v10, v8
  s_mov_b32 s24, {f32bits(1.0/448)}
  s_mov_b32 s25, {f32bits(1e-5)}
  v_mul_f32 v8, s24, v8
  v_mul_f32 v7, s24, v7
  v_fma_f32 v7, -v8, v8, v7
  v_max_f32 v7, 0, v7
  v_add_f32 v7, s25, v7
  v_rsq_f32 v9, v7
  s_lshr_b32 s26, s{sW}, 1
  s_lshl_b32 s26, s26, 8
  s_add_u32 s26, s26, {VSC}
  s_lshl_b32 s27, s31, 7
  s_add_u32 s27, s27, s26
  v_lshlrev_b32 v3, 3, v3
  v_add_u32 v4, s27, v3
  v_add_u32 v3, s26, v3
  ds_write_b64 v4, v[8:9]
  v_lshrrev_b32 v4, 4, v1
  v_lshlrev_b32 v4, 5, v4
  v_add_u32 v4, s26, v4
  s_waitcnt lgkmcnt(0)
  s_barrier
  ds_read_b64 v[32:33], v3
  ds_read_b64 v[34:35], v3 offset:128
  ds_read_b128 v[36:39], v4
  ds_read_b128 v[40:43], v4 offset:16
  ds_read_b128 v[44:47], v4 offset:128
  ds_read_b128 v[48:51], v4 offset:144''')
        qs = (DH ** -0.5) * LOG2E
        e(f'''
  s_cmp_eq_u32 s31, 0
  s_cselect_b32 s25, {f32bits(qs)}, 1.0
  s_cselect_b32 s27, 0x3f80, 0
  v_mov_b32 v7, s27
  v_cmp_le_u32 s[28:29], 48, v1
  s_waitcnt lgkmcnt(4)
  v_mul_f32 v5, s25, v33
  v_mul_f32 v6, s25, v35''')
        for rt in range(2):
            mu = 32 + 2*rt; rr = 5 + rt
            for tt in range(2):
                c = acc(rt, tt); cs = 52 + tt*4
                for r in range(4):
                    e(f'  v_fma_f32 v{c+r}, -v{mu}, v{cs+r}, v{c+r}\n  v_mul_f32 v{c+r}, v{rr}, v{c+r}')
            o = 8 + rt*4
            a0, a1 = acc(rt, 0), acc(rt, 1)
            e(f'''
  v_cvt_pk_bf16_f32 v{o}, v{a0}, v{a0+1}
  v_cvt_pk_bf16_f32 v{o+1}, v{a0+2}, v{a0+3}
  v_cvt_pk_bf16_f32 v{o+2}, v{a1}, v{a1+1}
  v_cvt_pk_bf16_f32 v{o+3}, v{a1+2}, v{a1+3}
  v_cndmask_b32 v{o+2}, v{o+2}, v7, s[28:29]
  v_cndmask_b32 v{o+3}, v{o+3}, 0, s[28:29]''')
        La = self.L('L_qk'); Lb = self.L('L_qk')
        e(f'''
  s_and_b32 s24, s{sM}, 15
  s_lshl_b32 s25, s24, 7
  s_lshl_b32 s26, s{sX}, 4
  s_add_u32 s25, s25, s26
  s_lshr_b32 s26, s{sM}, 4
  s_lshl_b32 s26, s26, 3
  s_add_u32 s25, s25, s26
  s_lshr_b32 s26, s{sW}, 1
  s_lshl_b32 s26, s26, 1
  s_add_u32 s25, s25, s26
  s_lshl_b32 s30, s25, 10
  s_add_u32 s30, s30, s{sLOFF}
  s_cmp_eq_u32 s31, 0
  s_cbranch_scc0 {La}
  s_lshl_b32 s26, s26, 10
  s_add_u32 s26, s26, {QL}
  v_add_u32 v3, s26, v2
  ds_write_b128 v3, v[8:11]
  ds_write_b128 v3, v[12:15] offset:1024''')
        if self.o.get('dbgq'):
            e(f'  buffer_store_dwordx4 v[8:11], v2, {WSR}, s30 offen sc1\n  buffer_store_dwordx4 v[12:15], v2, {WSR}, s30 offen offset:1024 sc1')
        e(f'''
  s_branch {Lb}
{La}:
  s_add_u32 s27, s30, {KF}
  buffer_store_dwordx4 v[8:11], v2, {WSR}, s27 offen sc1
  buffer_store_dwordx4 v[12:15], v2, {WSR}, s27 offen offset:1024 sc1
{Lb}:
  s_lshl_b32 s26, s31, 10
  s_add_u32 s27, s30, s26
  s_add_u32 s27, s27, {VF}
  v_and_b32 v3, 15, v1
  v_cmp_le_u32 s[28:29], 12, v3
  s_cmp_eq_u32 s31, 1
  s_cselect_b64 s[28:29], s[28:29], 0
  v_cmp_eq_u32 vcc, 12, v3
  v_mov_b32 v7, 0x3f803f80
  s_nop 0
  v_cndmask_b32 v7, 0, v7, vcc
  s_waitcnt lgkmcnt(0)''')
        for rt in range(2):
            c = acc(rt, 2)
            for r in range(4):
                mu = 36 + rt*8 + 2*r
                e(f'  v_fma_f32 v{c+r}, -v{mu}, v60, v{c+r}\n  v_mul_f32 v{c+r}, v{mu+1}, v{c+r}')
            o = 16 + rt*2
            e(f'''
  v_cvt_pk_bf16_f32 v{o}, v{c}, v{c+1}
  v_cvt_pk_bf16_f32 v{o+1}, v{c+2}, v{c+3}
  v_cndmask_b32 v{o}, v{o}, v7, s[28:29]
  v_cndmask_b32 v{o+1}, v{o+1}, v7, s[28:29]''')
        e(f'  buffer_store_dwordx4 v[16:19], v2, {WSR}, s27 offen sc1')

    def t_addr(self):
        e = self.e
        Lb = self.L('L_t'); Lc = self.L('L_t')
        e(f'''
  s_lshl_b32 s30, s{sM}, 3
  s_add_u32 s30, s30, s{sW}
  s_min_u32 s36, s30, 239
  s_cmp_ge_u32 s36, 128
  s_cbranch_scc1 {Lb}
  s_mov_b32 s12, s{P_W1}
  s_mov_b32 s13, s{P_W1+1}
  s_mov_b32 s31, {F*2}
  s_lshr_b32 s32, s36, 5
  s_and_b32 s33, s36, 31
  s_lshl_b32 s34, s{sX}, 2
  s_add_u32 s34, s34, s32
  s_mul_i32 s34, s34, 112
  s_lshl_b32 s35, s36, 13
  s_add_u32 s35, s35, {W1T}
  s_branch {Lc}
{Lb}:
  s_mov_b32 s12, s{P_W2}
  s_mov_b32 s13, s{P_W2+1}
  s_mov_b32 s31, {S*2}
  s_sub_u32 s36, s36, 128
  s_mul_i32 s32, s36, 147
  s_lshr_b32 s32, s32, 12
  s_mul_i32 s33, s32, 28
  s_sub_u32 s33, s36, s33
  s_lshl_b32 s34, s{sX}, 2
  s_add_u32 s34, s34, s32
  s_lshl_b32 s34, s34, 7
  s_lshl_b32 s35, s36, 13
  s_add_u32 s35, s35, {W2T}
{Lc}:
  s_mov_b32 s14, {S*F*2}
  s_mov_b32 s15, 0x20000
  s_lshl_b32 s33, s33, 6
  s_mul_i32 s33, s33, s31
  s_add_u32 s33, s33, s34
  s_add_u32 s35, s35, s{sWX}
  v_lshrrev_b32 v3, 3, v1
  v_and_b32 v4, 7, v1
  v_bfe_u32 v5, v3, 1, 1
  v_lshlrev_b32 v5, 2, v5
  v_xor_b32 v4, v4, v5
  v_mul_lo_u32 v5, s31, v3
  v_lshl_add_u32 v8, v4, 4, v5
  s_lshl_b32 s37, s31, 3''')
    def t_addr_wo(self):
        e = self.e
        self.srd(BR, P_WO, D*D*2)
        e(f'''
  s_min_u32 s42, s30, 111
  s_lshr_b32 s43, s42, 4
  s_and_b32 s40, s42, 15
  v_lshrrev_b32 v3, 3, v1
  v_and_b32 v4, 7, v1
  v_bfe_u32 v5, v3, 1, 2
  v_lshlrev_b32 v5, 1, v5
  v_xor_b32 v4, v4, v5
  v_mul_u32_u24 v5, 896, v3
  v_lshl_add_u32 v9, v4, 4, v5
  v_mov_b32 v6, 0x7ff00000
  v_cmp_le_u32 vcc, 4, v3
  s_nop 1
  v_cndmask_b32 v10, v9, v6, vcc
  s_mul_i32 s40, s40, {28*896}
  s_lshl_b32 s43, s43, 7
  s_add_u32 s40, s40, s43
  s_lshl_b32 s41, s42, 12
  s_add_u32 s41, s41, {WOT}
  s_add_u32 s41, s41, s{sWX}''')
    def t_touch(self):
        e = self.e
        self.t_addr()
        e(f'  s_lshl_b32 s26, s{sW}, 10\n  s_add_u32 m0, s26, 67584')
        for n in range(8):
            e(f'  buffer_load_dwordx4 v8, {AR}, s33 offen lds\n  s_add_u32 s33, s33, s37')
        self.t_addr_wo()
        for n4 in range(4):
            e(f'  s_add_u32 s27, s40, {n4*8*896}\n  buffer_load_dwordx4 v{10 if n4 == 3 else 9}, {BR}, s27 offen lds')
    def tphase(self):
        e = self.e
        self.t_addr()
        e(f'  s_lshl_b32 s26, s{sW}, 13\n  s_add_u32 s26, s26, 65536')
        for n in range(8):
            e(f'''
  s_add_u32 m0, s26, {n*1024}
  s_nop 0
  buffer_load_dwordx4 v8, {AR}, s33 offen lds
  s_add_u32 s33, s33, s37''')
        self.t_addr_wo()
        e(f'  s_lshl_b32 s39, s{sW}, 12')
        for n4 in range(4):
            e(f'''
  s_add_u32 m0, s39, {n4*1024}
  s_add_u32 s27, s40, {n4*8*896}
  buffer_load_dwordx4 v{10 if n4 == 3 else 9}, {BR}, s27 offen lds''')
        e(f'''
  v_lshrrev_b32 v3, 4, v1
  v_bfe_u32 v4, v1, 2, 2
  v_lshrrev_b32 v5, 1, v3
  v_lshl_add_u32 v5, v5, 3, v4
  v_lshlrev_b32 v5, 7, v5
  v_and_b32 v6, 1, v1
  v_lshl_add_u32 v5, v6, 3, v5
  v_bfe_u32 v6, v1, 1, 1
  v_and_b32 v7, 1, v3
  v_lshl_add_u32 v6, v7, 1, v6
  v_lshl_add_u32 v5, v6, 4, v5
  v_add_u32 v5, s26, v5
  v_lshrrev_b32 v6, 1, v4
  v_lshl_add_u32 v24, v6, 6, v5
  v_xor_b32 v6, 1, v6
  v_lshl_add_u32 v25, v6, 6, v5
  v_lshl_add_u32 v5, v3, 2, v4
  v_bfe_u32 v6, v5, 1, 2
  v_lshlrev_b32 v5, 7, v5
  v_and_b32 v7, 1, v1
  v_lshl_add_u32 v5, v7, 3, v5
  v_bfe_u32 v7, v1, 1, 1
  v_lshl_add_u32 v5, v7, 4, v5
  v_add_u32 v5, s39, v5''')
        for nt in range(4):
            e(f'  v_xor_b32 v7, {nt}, v6\n  v_lshl_add_u32 v{26+nt}, v7, 5, v5')
        e('  s_waitcnt vmcnt(4)')
        for ks in range(4):
            for tl in range(2):
                r = 32 + (ks*2 + tl)*4; o = ks*2048
                e(f'  ds_read_b64_tr_b16 v[{r}:{r+1}], v{24+tl} offset:{o}\n  ds_read_b64_tr_b16 v[{r+2}:{r+3}], v{24+tl} offset:{o+512}')
        e('  s_waitcnt vmcnt(0)')
        for nt in range(4):
            r = 64 + 4*nt
            e(f'  ds_read_b64_tr_b16 v[{r}:{r+1}], v{26+nt}\n  ds_read_b64_tr_b16 v[{r+2}:{r+3}], v{26+nt} offset:2048')
        L1 = self.L('L_t'); L2 = self.L('L_t')
        e(f'  s_waitcnt lgkmcnt(0)\n  s_add_u32 s36, s35, 4096\n  s_cmp_ge_u32 s30, 240\n  s_cbranch_scc1 {L1}')
        self.lstore([f'  buffer_store_dwordx4 v[{32+4*n}:{35+4*n}], v2, {WSR}, s{35 if n < 4 else 36} offen offset:{(n % 4)*1024}' for n in range(8)])
        e(f'{L1}:\n  s_cmp_ge_u32 s30, 112\n  s_cbranch_scc1 {L2}')
        self.lstore([f'  buffer_store_dwordx4 v[{64+4*nt}:{67+4*nt}], v2, {WSR}, s41 offen offset:{nt*1024}' for nt in range(4)])
        e(f'{L2}:')

    def w_loads(self, n):
        out = []
        for k in range(n):
            r = 128 + 4*k
            s = f'  buffer_load_dwordx4 v[{r}:{r+3}], v2, {WSR}, s56 offen offset:{(k % 4)*1024} sc1'
            if k % 4 == 3: s += '\n  s_add_u32 s56, s56, 4096'
            out.append(s)
        return out
    def w1_base(self):
        self.e(f'''
  s_lshl_b32 s56, s{sMQ}, 18
  s_lshl_b32 s57, s{sW}, 15
  s_add_u32 s56, s56, s57
  s_add_u32 s56, s56, s{sWX}
  s_add_u32 s56, s56, {W1T}''')
    def w2_base(self):
        self.e(f'''
  s_mul_i32 s56, s{sMQ}, {112*2048}
  s_mul_i32 s57, s{sW}, {28*1024}
  s_add_u32 s56, s56, s57
  s_add_u32 s56, s56, s{sWX}
  s_add_u32 s56, s56, {W2T}''')

    def att(self, mid=None, bg=None):
        e = self.e
        Sx = lambda n: 32 + 4*n
        NS = 6
        FR = lambda n: 104 + 4*(n % NS)
        e(f'''
  v_and_b32 v16, 15, v1
  v_lshrrev_b32 v17, 4, v1
  v_lshlrev_b32 v17, 2, v17
  v_mov_b32 v18, 0xf149f2ca
  s_and_b32 s35, s{sW}, 1
  s_cmp_eq_u32 s35, 0
  s_cselect_b64 s[36:37], -1, 0''')
        for r in range(4):
            e(f'''
  v_add_u32 v19, {r}, v17
  v_cmp_gt_u32 vcc, v19, v16
  s_nop 1
  v_cndmask_b32 v20, v18, 0, vcc
  v_cndmask_b32 v21, 0, v18, vcc
  v_cndmask_b32 v{Sx(0)+r}, v18, v20, s[36:37]
  v_cndmask_b32 v{Sx(1)+r}, v20, 0, s[36:37]
  v_cndmask_b32 v{Sx(16)+r}, 0, v21, s[36:37]
  v_cndmask_b32 v{Sx(17)+r}, v21, v18, s[36:37]''')
        e(f'''
  s_lshl_b32 s24, s{sX}, 1
  s_lshr_b32 s25, s{sM}, 4
  s_add_u32 s28, s24, s25
  s_and_b32 s29, s{sM}, 15
  s_add_u32 s30, s{sPH}, 1
  s_lshl_b32 s33, s{sW}, 10
  s_add_u32 s33, s33, {QL}
  v_add_u32 v19, s33, v2
  ds_read_b128 v[4:7], v19''')
        self.wgpoll(f'''
  v_min_u32 v3, 2, v1
  v_sub_u32 v3, s28, v3
  v_max_i32 v3, 0, v3
  v_and_b32 v22, 1, v3
  v_lshlrev_b32 v22, 4, v22
  v_add_u32 v22, s29, v22
  v_lshlrev_b32 v22, 3, v22
  v_lshrrev_b32 v3, 1, v3
  v_add_u32 v3, v3, v22
  v_lshlrev_b32 v3, 7, v3
  v_mov_b32 v23, v4''', 30) if False else None
        L = self.L('L_wp')
        e(f'''
  s_cmp_lg_u32 s{sW}, 0
  s_cbranch_scc1 {L}
  v_min_u32 v3, 2, v1
  v_sub_u32 v3, s28, v3
  v_max_i32 v3, 0, v3
  v_and_b32 v22, 1, v3
  v_lshlrev_b32 v22, 4, v22
  v_add_u32 v22, s29, v22
  v_lshlrev_b32 v22, 3, v22
  v_lshrrev_b32 v3, 1, v3
  v_add_u32 v3, v3, v22
  v_lshlrev_b32 v3, 7, v3''')
        self.poll(3, 30, vtmp=22)
        e(f'{L}:\n  s_barrier')
        self.stamp(9)
        e(f'''
  s_lshl_b32 s26, s28, 3
  s_sub_u32 s26, s26, 16
  s_mul_i32 s27, s{sW}, 3
  s_add_u32 s28, s26, s27
  s_lshl_b32 s31, s29, 7
  s_mul_i32 s32, s{sW}, 3072''')
        for n in range(3):
            e(f'''
  s_add_u32 s33, s28, {n}
  s_add_u32 s34, s33, s31
  s_lshl_b32 s34, s34, 10
  s_add_u32 s34, s34, s{sLOFF}
  s_cmp_lt_i32 s33, 0
  s_cselect_b32 s34, 0x7ff00000, s34
  s_add_u32 s38, s34, {KF}
  s_add_u32 m0, s32, {KT + n*1024}
  s_nop 0
  buffer_load_dwordx4 v2, {WSR}, s38 offen sc1 lds
  s_add_u32 s38, s34, {VF}
  s_add_u32 m0, s32, {VT + n*1024}
  s_nop 0
  buffer_load_dwordx4 v2, {WSR}, s38 offen sc1 lds''')
        nmid = mid() if mid else 0
        Lnf = self.L('L_nf')
        if isinstance(nmid, str):
            e(nmid)
        else:
            e(f'  s_waitcnt vmcnt({nmid})')
        e(f'''
  s_cmp_ge_i32 s28, 0
  s_cbranch_scc1 {Lnf}
  v_lshlrev_b32 v19, 4, v16
  v_add_u32 v19, s32, v19
  v_mov_b32 v20, 0xf149
  s_mov_b64 exec, 0xffff''')
        for n in range(3):
            Ln = self.L('L_nf')
            e(f'''
  s_add_u32 s33, s28, {n}
  s_cmp_ge_i32 s33, 0
  s_cbranch_scc1 {Ln}
  ds_write_b32 v19, v20 offset:{KT + n*1024 + 48*16 + 8}
{Ln}:''')
        e(f'''
  s_mov_b64 exec, -1
{Lnf}:
  s_waitcnt lgkmcnt(0)
  s_barrier
  s_lshr_b32 s33, s{sW}, 1
  s_lshl_b32 s33, s33, 11
  v_add_u32 v19, s33, v2''')
        self.stamp(10)
        for n in range(NS):
            e(f'  ds_read_b128 v[{FR(n)}:{FR(n)+3}], v19 offset:{KT + n*1024}')
        order = [('K', n) for n in range(18)] + [('V', n) for n in range(18)]
        nxt = NS
        for n in range(18):
            e(f'  s_waitcnt lgkmcnt({NS-1})')
            C = f'v[{Sx(n)}:{Sx(n)+3}]' if n in (0, 1, 16, 17) else '0'
            e(f'  v_mfma_f32_16x16x32_bf16 v[{Sx(n)}:{Sx(n)+3}], v[{FR(n)}:{FR(n)+3}], v[4:7], {C}')
            kind, idx = order[nxt]
            e(f'  ds_read_b128 v[{FR(nxt)}:{FR(nxt)+3}], v19 offset:{(KT if kind == "K" else VT) + idx*1024}')
            nxt += 1
        self.stamp(11)
        e(f'  v_max3_f32 v20, v32, v33, v34\n  v_max3_f32 v21, v35, v36, v37')
        regs = list(range(38, 32 + 72)); k = 0; t = 0
        while k + 1 < len(regs):
            e(f'  v_max3_f32 v{20+t}, v{20+t}, v{regs[k]}, v{regs[k+1]}'); k += 2; t ^= 1
        e('''
  v_max_f32 v20, v20, v21
  v_mov_b32 v21, v20
  v_permlane32_swap_b32 v21, v20
  v_max_f32 v20, v21, v20
  v_mov_b32 v21, v20
  v_permlane16_swap_b32 v21, v20
  v_max_f32 v20, v21, v20
  v_mov_b32 v21, v20''')
        vn = 0
        bg = list(bg or [])
        for p in range(9):
            b = 32 + 8*p
            for _ in range(2):
                if bg and p >= 1: e(bg.pop(0))
            for r in range(b, b + 8, 2):
                e(f'  v_pk_add_f32 v[{r}:{r+1}], v[{r}:{r+1}], v[20:21] neg_lo:[0,1] neg_hi:[0,1]')
            for r in range(b, b + 8):
                e(f'  v_exp_f32 v{r}, v{r}')
            e(f'''
  v_cvt_pk_bf16_f32 v{b}, v{b}, v{b+1}
  v_cvt_pk_bf16_f32 v{b+1}, v{b+2}, v{b+3}
  v_cvt_pk_bf16_f32 v{b+2}, v{b+4}, v{b+5}
  v_cvt_pk_bf16_f32 v{b+3}, v{b+6}, v{b+7}''')
            for T in range(2):
                c = 8 + 4*T
                C = '0' if p == 0 else f'v[{c}:{c+3}]'
                g = 18 + vn
                remaining = min(NS - 1, 35 - g)
                e(f'  s_waitcnt lgkmcnt({remaining})')
                e(f'  v_mfma_f32_16x16x32_bf16 v[{c}:{c+3}], v[{FR(g)}:{FR(g)+3}], v[{b}:{b+3}], {C}')
                if nxt < 36:
                    kind, idx = order[nxt]
                    e(f'  ds_read_b128 v[{FR(nxt)}:{FR(nxt)+3}], v19 offset:{VT + idx*1024}')
                    nxt += 1
                vn += 1
        e(f'''
  v_mov_b32 v21, v12
  v_mov_b32 v22, v12
  v_permlane32_swap_b32 v21, v22
  v_mov_b32 v21, v22
  v_permlane16_swap_b32 v21, v22
  v_rcp_f32 v22, v22''')
        for r in range(8): e(f'  v_mul_f32 v{8+r}, v{8+r}, v22')
        e(f'''
  v_cvt_pk_bf16_f32 v24, v8, v9
  v_cvt_pk_bf16_f32 v25, v10, v11
  v_cvt_pk_bf16_f32 v26, v12, v13
  v_cvt_pk_bf16_f32 v27, v14, v15
  s_lshl_b32 s24, s{sX}, 1
  s_lshr_b32 s25, s{sM}, 4
  s_add_u32 s24, s24, s25
  s_lshl_b32 s24, s24, 3
  s_add_u32 s24, s24, s{sW}
  s_lshl_b32 s33, s24, 4
  s_add_u32 s33, s33, s29
  s_lshl_b32 s33, s33, 10
  s_add_u32 s33, s33, s{sLOFF}
  s_add_u32 s33, s33, {OF}''')
        self.lstore([f'  buffer_store_dwordx4 v[24:27], v2, {WSR}, s33 offen'])

    def wo_w_dma(self):
        e = self.e
        e(f'''
  s_lshl_b32 s24, s{sDBLK}, 16
  s_add_u32 s24, s24, s{sWX}
  s_add_u32 s24, s24, {WOT}
  s_lshl_b32 s25, s{sW}, 13
  s_add_u32 s24, s24, s25
  s_add_u32 s26, s25, {WOL}''')
        for n in range(8):
            e(f'''
  s_add_u32 m0, s26, {n*1024}
  s_add_u32 s27, s24, {n*1024}
  buffer_load_dwordx4 v2, {WSR}, s27 offen sc1 lds''')
    def wo_main(self):
        e = self.e
        of = lambda hh: 64 + 4*hh
        acc = lambda nt: 96 + 4*nt
        wf = lambda n: 32 + 4*(n % 8)
        e(f'''
  s_and_b32 s24, s{sW}, 3
  s_lshl_b32 s25, s{sSBLK}, 2
  s_add_u32 s30, s24, s25
  s_lshr_b32 s31, s{sW}, 2
  s_lshl_b32 s28, s31, 3
  s_add_u32 s32, s{sPH}, 2
  s_lshl_b32 s24, s31, 15
  s_add_u32 s24, s24, {WOL}
  v_add_u32 v8, s24, v2
  s_lshl_b32 s33, s30, 4
  s_add_u32 s33, s33, s28
  s_lshl_b32 s33, s33, 10
  s_add_u32 s33, s33, s{sLOFF}
  s_add_u32 s33, s33, {OF}''')
        seq = [(hh, nt) for hh in range(8) for nt in range(4)]
        for n in range(8):
            hh, nt = seq[n]; e(f'  ds_read_b128 v[{wf(n)}:{wf(n)+3}], v8 offset:{(hh*4+nt)*1024}')
        self.wgpoll(f'''
  s_lshr_b32 s26, s{sSBLK}, 1
  s_and_b32 s27, s26, 1
  s_lshl_b32 s27, s27, 4
  v_and_b32 v3, 15, v1
  v_add_u32 v3, s27, v3
  v_lshlrev_b32 v3, 2, v3
  s_lshl_b32 s26, s{sX}, 7
  s_add_u32 s26, s26, {LF_OFF}
  v_add_u32 v3, s26, v3''', 32)
        self.stamp(14)
        for hh in range(8):
            e(f'  s_add_u32 s34, s33, {hh*1024}\n  buffer_load_dwordx4 v[{of(hh)}:{of(hh)+3}], v2, {WSR}, s34 offen sc1')
        for n, (hh, nt) in enumerate(seq):
            if nt == 0: e(f'  s_waitcnt vmcnt({7 - hh})')
            e(f'  s_waitcnt lgkmcnt({min(7, 31 - n)})')
            c = acc(nt); C = '0' if hh == 0 else f'v[{c}:{c+3}]'
            e(f'  v_mfma_f32_16x16x32_bf16 v[{c}:{c+3}], v[{of(hh)}:{of(hh)+3}], v[{wf(n)}:{wf(n)+3}], {C}')
            if n + 8 < 32:
                h2, n2 = seq[n + 8]; e(f'  ds_read_b128 v[{wf(n+8)}:{wf(n+8)+3}], v8 offset:{(h2*4+n2)*1024}')
        self.stamp(15)
        La = self.L('L_wo'); Lb = self.L('L_wo')
        e(f'''
  s_lshl_b32 s24, s{sW}, 11
  v_add_u32 v4, s24, v2
  s_xor_b32 s25, s{sW}, 4
  s_lshl_b32 s25, s25, 11
  v_add_u32 v5, s25, v2
  v_lshrrev_b32 v6, 4, v1
  v_lshlrev_b32 v6, 2, v6
  s_and_b32 s24, s{sW}, 3
  s_lshl_b32 s24, s24, 4
  v_add_u32 v6, s24, v6
  v_mul_u32_u24 v6, 272, v6
  v_and_b32 v7, 15, v1
  v_lshl_add_u32 v6, v7, 2, v6
  s_lshl_b32 s24, s31, 7
  s_add_u32 s24, s24, {RES}
  v_add_u32 v6, s24, v6''')
        for t in range(2):
            for r in range(4): e(f'  ds_read_b32 v{112 + t*4 + r}, v6 offset:{r*272 + t*64}')
        e(f'''
  s_cmp_eq_u32 s31, 0
  s_cbranch_scc0 {La}
  ds_write_b128 v4, v[104:107]
  ds_write_b128 v4, v[108:111] offset:1024
  s_branch {Lb}
{La}:
  ds_write_b128 v4, v[96:99]
  ds_write_b128 v4, v[100:103] offset:1024
  s_nop 1
  v_mov_b32 v96, v104
  v_mov_b32 v97, v105
  v_mov_b32 v98, v106
  v_mov_b32 v99, v107
  v_mov_b32 v100, v108
  v_mov_b32 v101, v109
  v_mov_b32 v102, v110
  v_mov_b32 v103, v111
{Lb}:''')
        for k in range(8): e(f'  s_waitcnt lgkmcnt(2)\n  v_add_f32 v{96+k}, v{96+k}, v{112+k}' if k == 0 else f'  v_add_f32 v{96+k}, v{96+k}, v{112+k}')
        e(f'''
  s_waitcnt lgkmcnt(0)
  s_barrier
  ds_read_b128 v[104:107], v5
  ds_read_b128 v[108:111], v5 offset:1024
  s_lshl_b32 s24, s{sDBLK}, 1
  s_add_u32 s24, s24, s31
  s_lshl_b32 s25, s30, 4
  s_add_u32 s26, s25, s24
  s_lshl_b32 s27, s26, 7
  s_add_u32 s27, s27, s{sLOFF}
  s_add_u32 s27, s27, {ST}
  v_lshrrev_b32 v3, 4, v1
  v_lshlrev_b32 v3, 5, v3
  s_lshl_b32 s28, s{sLAY}, 13
  s_add_u32 s28, s28, {XF_OFF}
  s_lshl_b32 s29, s26, 2
  s_add_u32 s29, s29, s28
  s_waitcnt lgkmcnt(0)''')
        for k in range(8): e(f'  v_add_f32 v{96+k}, v{96+k}, v{104+k}')
        for r in range(4):
            e(f'''
  v_add_f32 v{104+2*r}, v{96+r}, v{100+r}
  v_mul_f32 v{105+2*r}, v{96+r}, v{96+r}
  v_fmac_f32 v{105+2*r}, v{100+r}, v{100+r}''')
        for sh in (8, 4, 2, 1):
            for k in range(8): e(f'  v_add_f32 v{104+k}, v{104+k}, v{104+k} row_ror:{sh} row_mask:0xf bank_mask:0xf')
        e(f'''
  v_cmp_eq_u32 vcc, 0, v7
  s_and_saveexec_b64 s[36:37], vcc''')
        self.lstore([f'  buffer_store_dwordx4 v[104:107], v3, {WSR}, s27 offen', f'  buffer_store_dwordx4 v[108:111], v3, {WSR}, s27 offen offset:16'])
        e('  s_mov_b64 exec, s[36:37]')
        for t in range(2):
            for r in range(4): e(f'  ds_write_b32 v6, v{96 + t*4 + r} offset:{r*272 + t*64}')
        e(f'''
  v_mov_b32 v4, 1
  s_lshl_b32 s34, s25, 2
  s_add_u32 s34, s34, s28
  v_min_u32 v5, 13, v1
  v_lshlrev_b32 v5, 2, v5
  v_add_u32 v5, s34, v5
  s_lshl_b32 s27, s25, 7
  s_add_u32 s27, s27, s{sLOFF}
  s_add_u32 s27, s27, {ST}
  v_lshl_add_u32 v8, v7, 7, v3
  v_mov_b32 v9, 0x7ff00000
  v_cmp_le_u32 vcc, 14, v7
  s_nop 1
  v_cndmask_b32 v8, v8, v9, vcc
  s_waitcnt vmcnt(0)
  s_mov_b64 exec, 1''')
        self.local_flag_store(4, 29)
        e('  s_mov_b64 exec, -1')
        self.stamp(16)
        self.poll(5, '1')
        self.stamp(17)
        e(f'''
  buffer_load_dwordx4 v[104:107], v8, {WSR}, s27 offen sc1
  buffer_load_dwordx4 v[108:111], v8, {WSR}, s27 offen offset:16 sc1
  s_mov_b32 s24, {f32bits(1.0/448)}
  s_mov_b32 s25, {f32bits(1e-5)}
  s_waitcnt vmcnt(0)''')
        for sh in (8, 4, 2, 1):
            for k in range(8): e(f'  v_add_f32 v{104+k}, v{104+k}, v{104+k} row_ror:{sh} row_mask:0xf bank_mask:0xf')
        for r in range(4):
            su, sq = 104 + 2*r, 105 + 2*r
            e(f'  v_mul_f32 v{su}, s24, v{su}\n  v_mul_f32 v{sq}, s24, v{sq}')
        for r in range(4):
            su, sq = 104 + 2*r, 105 + 2*r
            e(f'  v_fma_f32 v{sq}, -v{su}, v{su}, v{sq}\n  v_max_f32 v{sq}, 0, v{sq}\n  v_add_f32 v{8+r}, s25, v{sq}')
        for r in range(4): e(f'  v_rsq_f32 v{8+r}, v{8+r}')
        for r in range(4): e(f'  v_mul_f32 v{12+r}, v{8+r}, v{8+r}')
        for r in range(4): e(f'  v_fma_f32 v{12+r}, v{12+r}, v{105+2*r}, s25')
        for r in range(4): e(f'  v_rsq_f32 v{12+r}, v{12+r}')
        for r in range(4): e(f'  v_sub_f32 v{96+r}, v{96+r}, v{104+2*r}\n  v_sub_f32 v{100+r}, v{100+r}, v{104+2*r}')
        for r in range(4): e(f'  v_mul_f32 v{8+r}, v{8+r}, v{12+r}')
        for r in range(4): e(f'  v_mul_f32 v{96+r}, v{96+r}, v{8+r}\n  v_mul_f32 v{100+r}, v{100+r}, v{8+r}')
        e(f'''
  v_cvt_pk_bf16_f32 v16, v96, v97
  v_cvt_pk_bf16_f32 v17, v98, v99
  v_cvt_pk_bf16_f32 v18, v100, v101
  v_cvt_pk_bf16_f32 v19, v102, v103
  s_lshl_b32 s24, s{sDBLK}, 1
  s_add_u32 s24, s24, s31
  s_lshl_b32 s24, s24, 7
  s_add_u32 s24, s24, s30
  s_lshl_b32 s24, s24, 10
  s_add_u32 s24, s24, s{sLOFF}
  s_add_u32 s24, s24, {HT}
  v_permlane16_swap_b32 v16, v18
  v_permlane16_swap_b32 v17, v19
  buffer_store_dwordx4 v[16:19], v2, {WSR}, s24 offen sc1''')

    def b_main(self, which, bg=None, bg_base=None):
        e = self.e
        nks = 16 if which == 1 else 14
        Wf = lambda ks, tl: 128 + (ks*2 + tl)*4
        acc = lambda a, b: 64 + (a*2 + b)*16
        NB = self.o.get('nb', 14)
        Af = lambda n: 8 + 4*(n % NB)
        if which == 1:
            e(f'''
  s_mul_i32 s24, s{sSBLK}, 112
  s_min_u32 s25, s{sW}, 6
  s_lshl_b32 s25, s25, 4
  s_add_u32 s24, s24, s25
  s_load_dwordx4 s[40:43], s[{P_B1}:{P_B1+1}], s24''')
        else:
            self.srd(BR, P_B2, S*2)
            e(f'''
  s_lshl_b32 s24, s{sSBLK}, 7
  v_lshlrev_b32 v5, 1, v1
  buffer_load_ushort v240, v5, {BR}, s24 offen''')
        NT = 128 if which == 1 else 112
        e(f'''
  s_add_u32 s32, s{sPH}, {3 if which == 1 else 4}
  s_lshl_b32 s34, s{sDBLK}, 1
  s_mul_i32 s34, s34, {NT}
  s_mul_i32 s25, s{sW}, {nks}
  s_add_u32 s34, s34, s25
  s_lshl_b32 s34, s34, 10
  s_add_u32 s34, s34, s{sLOFF}
  s_add_u32 s34, s34, {HT if which == 1 else UF}
  s_add_u32 s35, s34, {NT*1024}''')
        self.wgpoll(f'''
  v_and_b32 v3, 3, v1
  v_mul_u32_u24 v3, 7, v3
  v_add_u32 v3, s{sDBLK}, v3
  v_lshlrev_b32 v3, 3, v3
  v_bfe_u32 v5, v1, 2, 3
  v_add_u32 v3, v5, v3
  v_lshlrev_b32 v3, 7, v3''', 32)
        self.stamp(20 if which == 1 else 26)
        if self.o.get('prio'):
            Lp = self.L('L_pr')
            e(f'  s_cmp_lt_u32 s{sW}, 4\n  s_cbranch_scc1 {Lp}\n  s_setprio {self.o["prio"]}\n{Lp}:')
        nfr = 2*nks
        def ld(n):
            ks, dt = n // 2, n % 2
            r = Af(n)
            e(f'  buffer_load_dwordx4 v[{r}:{r+3}], v2, {WSR}, s{34+dt} offen offset:{(ks % 4)*1024} sc1')
            if dt == 1 and ks % 4 == 3: e('  s_add_u32 s34, s34, 4096\n  s_add_u32 s35, s35, 4096')
        issued = 0
        while issued < min(NB, nfr):
            ld(issued); issued += 1
        for ks in range(nks):
            e(f'  s_waitcnt vmcnt({issued - (2*ks + 2)})')
            if ks == 0: self.stamp(21 if which == 1 else 27)
            for dt in range(2):
                x = Af(2*ks + dt)
                for tl in range(2):
                    w = Wf(ks, tl)
                    if which == 1:
                        c = acc(tl, dt); C = '0' if ks == 0 else f'v[{c}:{c+15}]'
                        e(f'  v_mfma_f32_32x32x16_bf16 v[{c}:{c+15}], v[{w}:{w+3}], v[{x}:{x+3}], {C}')
                    else:
                        c = acc(dt, tl); C = '0' if ks == 0 else f'v[{c}:{c+15}]'
                        e(f'  v_mfma_f32_32x32x16_bf16 v[{c}:{c+15}], v[{x}:{x+3}], v[{w}:{w+3}], {C}')
            for _ in range(2):
                if issued < nfr:
                    ld(issued); issued += 1
        if self.o.get('prio'): e('  s_setprio 0')
        self.stamp(22 if which == 1 else 28)
        e(f'''
  v_and_b32 v3, 31, v1
  v_mul_u32_u24 v3, 272, v3
  v_lshrrev_b32 v4, 5, v1
  v_lshl_add_u32 v3, v4, 4, v3
  s_mul_i32 s24, s{sW}, 17408
  v_add_u32 v3, s24, v3''')
        for a in range(2):
            for b in range(2):
                c = acc(a, b)
                for q in range(4):
                    e(f'  ds_write_b128 v3, v[{c+4*q}:{c+4*q+3}] offset:{b*32*272 + a*128 + q*32}')
        e(f'''
  v_mul_u32_u24 v3, 272, v1
  s_lshl_b32 s24, s{sW}, 5
  v_add_u32 v3, s24, v3
  v_add_u32 v5, 69632, v3
  s_waitcnt lgkmcnt(0)
  s_barrier''')
        for p in range(8):
            r = 8 + p*8
            base = 3 if p < 4 else 5
            o = (p % 4)*17408
            e(f'  ds_read_b128 v[{r}:{r+3}], v{base} offset:{o}\n  ds_read_b128 v[{r+4}:{r+7}], v{base} offset:{o+16}')
        if which == 2:
            e(f'  v_add_u32 v6, {RES}, v3\n  ds_read_b128 v[72:75], v6\n  ds_read_b128 v[76:79], v6 offset:16')
        extra = 2 if which == 2 else 0
        bg = list(bg or [])
        if bg_base: bg_base()
        for p in range(1, 8):
            if bg: e(bg.pop(0))
            e(f'  s_waitcnt lgkmcnt({min(15, (7 - p)*2 + extra)})')
            for k in range(8): e(f'  v_add_f32 v{8+k}, v{8+k}, v{8+p*8+k}')
        e('  s_waitcnt lgkmcnt(0)')
        for l in bg: e(l)
        self.stamp(23 if which == 1 else 29)
        if which == 1:
            c0 = -2.0*LOG2E*math.sqrt(2.0/math.pi); c1 = c0*0.044715
            e(f'  s_mov_b32 s24, {f32bits(c0)}\n  s_mov_b32 s25, {f32bits(c1)}')
            for k in range(8):
                src = 40 + k//2
                if k % 2 == 0: e(f'  s_lshl_b32 s26, s{src}, 16')
                else: e(f'  s_and_b32 s26, s{src}, 0xffff0000')
                e(f'  v_add_f32 v{8+k}, s26, v{8+k}')
            for k in range(8): e(f'  v_mul_f32 v{16+k}, v{8+k}, v{8+k}\n  v_mov_b32 v{24+k}, s24')
            for k in range(8): e(f'  v_fmac_f32 v{24+k}, s25, v{16+k}')
            for k in range(8): e(f'  v_mul_f32 v{24+k}, v{24+k}, v{8+k}')
            for k in range(8): e(f'  v_exp_f32 v{24+k}, v{24+k}')
            for k in range(8): e(f'  v_add_f32 v{24+k}, 1.0, v{24+k}')
            for k in range(8): e(f'  v_rcp_f32 v{24+k}, v{24+k}')
            for k in range(8): e(f'  v_mul_f32 v{8+k}, v{8+k}, v{24+k}')
            Ls = self.L('L_b1')
            e(f'''
  v_cvt_pk_bf16_f32 v16, v8, v9
  v_cvt_pk_bf16_f32 v17, v10, v11
  v_cvt_pk_bf16_f32 v18, v12, v13
  v_cvt_pk_bf16_f32 v19, v14, v15
  s_mul_i32 s24, s{sSBLK}, 7
  s_add_u32 s24, s24, s{sW}
  s_lshr_b32 s25, s24, 1
  s_and_b32 s24, s24, 1
  s_lshl_b32 s26, s{sDBLK}, 1
  s_mul_i32 s26, s26, 112
  s_add_u32 s26, s26, s25
  s_lshl_b32 s26, s26, 10
  s_lshl_b32 s24, s24, 9
  s_add_u32 s26, s26, s24
  s_add_u32 s26, s26, s{sLOFF}
  s_add_u32 s26, s26, {UF}
  v_and_b32 v3, 31, v1
  v_lshlrev_b32 v3, 4, v3
  v_lshrrev_b32 v4, 5, v1
  v_mul_u32_u24 v4, {112*1024}, v4
  v_add_u32 v3, v3, v4
  s_cmp_eq_u32 s{sW}, 7
  s_cbranch_scc1 {Ls}
  buffer_store_dwordx4 v[16:19], v3, {WSR}, s26 offen sc1
{Ls}:''')
        else:
            e('  v_lshlrev_b32 v4, 16, v240')
            for k in range(8): e(f'  v_add_f32 v{8+k}, v{8+k}, v4\n  v_add_f32 v{8+k}, v{8+k}, v{72+k}')
            La = self.L('L_b2'); Lb = self.L('L_b2')
            e(f'''
  ds_write_b128 v6, v[8:11]
  ds_write_b128 v6, v[12:15] offset:16
  v_cvt_pk_bf16_f32 v16, v8, v9
  v_cvt_pk_bf16_f32 v17, v10, v11
  v_cvt_pk_bf16_f32 v18, v12, v13
  v_cvt_pk_bf16_f32 v19, v14, v15
  s_cmp_eq_u32 s{sLAY}, 0
  s_cbranch_scc0 {La}
  v_and_b32 v3, 15, v1
  v_lshrrev_b32 v4, 2, v3''')
            self.pi_of(5, 4, 7)
            e(f'''
  s_and_b32 s24, s{sW}, 3
  v_xor_b32 v5, s24, v5
  v_lshl_add_u32 v5, v3, 2, v5
  v_lshlrev_b32 v5, 4, v5
  v_lshrrev_b32 v4, 4, v1
  v_mul_u32_u24 v4, 14336, v4
  v_add_u32 v5, v5, v4
  s_lshl_b32 s24, s{sSBLK}, 2
  s_mul_i32 s24, s24, 14
  s_lshl_b32 s25, s{sDBLK}, 1
  s_add_u32 s24, s24, s25
  s_lshr_b32 s25, s{sW}, 2
  s_add_u32 s24, s24, s25
  s_lshl_b32 s24, s24, 10
  s_add_u32 s24, s24, {ACT0 + X2}''')
            self.lstore([f'  buffer_store_dwordx4 v[16:19], v5, {WSR}, s24 offen'])
            e(f'  s_branch {Lb}\n{La}:')
            self.srd(BR, P_OUT, S*D*2)
            e(f'''
  s_mul_i32 s24, s{sSBLK}, {64*896}
  s_lshl_b32 s25, s{sDBLK}, 7
  s_add_u32 s24, s24, s25
  s_lshl_b32 s25, s{sW}, 4
  s_add_u32 s24, s24, s25
  v_mul_u32_u24 v5, 896, v1
  buffer_store_dwordx4 v[16:19], v5, {BR}, s24 offen
{Lb}:''')

    def build(self):
        e = self.e
        self.prologue()
        self.qkv_w0_issue()
        self.qkv_x_setup(0)
        self.qkv_x_dma(0, 0)
        self.res_load()
        self.init_flags()
        self.stamp(0)
        e('  s_waitcnt vmcnt(0)\n  s_barrier')
        self.publish_init()
        self.stamp(1)
        self.res_store()
        self.qkv_w0_finish()
        self.qkv_x_setup(0)
        self.qkv_x_dma(1, 0)
        self.t_touch()
        self.qkv_colsum()
        self.stamp(2)
        e('  s_branch L_qkv_main')
        e('L_layer:')
        self.stamp(0)
        self.qkv_x_setup(1)
        self.qkv_w1_issue()
        self.wgpoll(f'''
  v_min_u32 v3, 13, v1
  s_lshr_b32 s24, s{sM}, 4
  s_mul_i32 s24, s24, 14
  v_add_u32 v3, s24, v3
  v_lshlrev_b32 v3, 2, v3
  s_lshl_b32 s24, s{sX}, 7
  s_add_u32 s24, s24, {LF_OFF}
  v_add_u32 v3, s24, v3''', sPH)
        self.stamp(3)
        self.qkv_x_dma(0, 1)
        e('  s_waitcnt vmcnt(7)\n  s_barrier')
        self.stamp(1)
        self.qkv_w1_finish()
        self.stamp(2)
        self.qkv_x_dma(1, 1)
        e('L_qkv_main:')
        self.qkv_main()
        self.stamp(6)
        self.signal_g(1)
        self.stamp(7)
        Lh2 = self.L('L_h')
        e(f'  s_cmp_lg_u32 s{sLAY}, 0\n  s_cbranch_scc1 {Lh2}')
        self.handshake(VSC + 1024)
        self.qkv_w0_save()
        e('  s_waitcnt lgkmcnt(0)\n  s_barrier')
        self.handshake_read(VSC + 1024)
        e('  s_barrier')
        self.tphase()
        self.signal_l(1)
        e(f'{Lh2}:')
        self.stamp(8)
        w1 = self.w_loads(32)
        self.w1_base()
        def att_mid():
            La = self.L('L_am'); Lc = self.L('L_am'); Lb = self.L('L_am')
            e(f'''
  s_cmp_ge_u32 s{sM}, 28
  s_cbranch_scc1 {Lc}
  s_cmp_lg_u32 s{sLAY}, 0
  s_cbranch_scc1 {La}
  s_lshl_b32 s24, s{sX}, 7
  s_add_u32 s24, s24, {LF_OFF}
  v_and_b32 v3, 31, v1
  v_lshlrev_b32 v3, 2, v3
  v_add_u32 v3, s24, v3''')
            self.poll(3, '1', vtmp=22)
            e(f'{La}:')
            self.wo_w_dma()
            e(f'  s_waitcnt vmcnt(8)\n  s_branch {Lb}')
            e(f'{Lc}:\n  s_waitcnt vmcnt(0)\n{Lb}:')
            return '  s_nop 0'
        self.att(mid=att_mid, bg=w1[:12])
        self.stamp(12)
        self.signal_l(2)
        self.stamp(13)
        e(f'  s_cmp_ge_u32 s{sM}, 28\n  s_cbranch_scc1 L_idle')
        self.wo_main()
        self.stamp(18)
        self.signal_g(3)
        self.stamp(19)
        for l in w1[12:]: e(l)
        w2 = self.w_loads(28)
        self.b_main(1, bg=w2[:8], bg_base=self.w2_base)
        self.stamp(24)
        self.signal_g(4)
        self.stamp(25)
        for l in w2[8:]: e(l)
        self.b_main(2)
        self.stamp(30)
        self.signal_l(5)
        self.stamp(31)
        e('  s_branch L_skip\nL_idle:')
        Li = self.L('L_id')
        e(f'  s_cmp_lg_u32 s{sLAY}, 0\n  s_cbranch_scc1 L_skip\n  s_add_u32 s32, s{sPH}, 5')
        self.wgpoll(f'''
  v_min_u32 v3, 13, v1
  s_lshr_b32 s24, s{sM}, 4
  s_mul_i32 s24, s24, 14
  v_add_u32 v3, s24, v3
  v_lshlrev_b32 v3, 2, v3
  s_lshl_b32 s24, s{sX}, 7
  s_add_u32 s24, s24, {LF_OFF}
  v_add_u32 v3, s24, v3''', 32)
        e('L_skip:')
        e(f'''
  s_add_u32 s{sLAY}, s{sLAY}, 1
  s_add_u32 s{sPH}, s{sPH}, 5
  s_add_u32 s{sLOFF}, s{sLOFF}, {LSTRIDE}
  s_cmp_lt_u32 s{sLAY}, 2
  s_cbranch_scc1 L_layer''')
        self.stamp_flush()
        e('L_end:\n  s_endpgm')
        return self.finish()

    def finish(self):
        body = self.a.text()
        head = open(f'cdna_kernels/{NAME}.s.ref').read().split('; Override launch')[0]
        return head + f'''; @launch grid=(256,1,1) block=(512,1,1) lds={LDS_TOTAL}
.amdgcn_target "amdgcn-amd-amdhsa--gfx950"
.text
.globl {NAME}_kernel
.p2align 8
.type {NAME}_kernel,@function
{NAME}_kernel:
''' + body + f'''.section .rodata,"a"
.p2align 6
.amdhsa_kernel {NAME}_kernel
  .amdhsa_next_free_vgpr 256
  .amdhsa_next_free_sgpr 102
  .amdhsa_accum_offset 256
  .amdhsa_group_segment_fixed_size 0
  .amdhsa_kernarg_size 88
  .amdhsa_user_sgpr_count 2
  .amdhsa_user_sgpr_kernarg_segment_ptr 1
  .amdhsa_system_sgpr_workgroup_id_x 1
.end_amdhsa_kernel
'''

if __name__ == '__main__':
    import argparse
    ap = argparse.ArgumentParser()
    ap.add_argument('--timing', action='store_true')
    ap.add_argument('--slow', action='store_true')
    ap.add_argument('--dbgq', action='store_true')
    ap.add_argument('--nb', type=int, default=14)
    ap.add_argument('--prio', type=int, default=0)
    ap.add_argument('-o', default=f'cdna_kernels/{NAME}.s')
    args = ap.parse_args()
    open(args.o, 'w').write(Gen(args.timing, dict(slow=args.slow, dbgq=args.dbgq, nb=args.nb, prio=args.prio)).build())
    print('wrote', args.o)
```

```python
import sys, math, struct
sys.path.insert(0, 'gen')
from asmlib import Asm

NAME = 'interleave_layers__sliding_block__mixer_token_mlp__prompt'
S, D, H, DH, F = 2048, 448, 16, 28, 1792

GF_OFF = 0; XF_OFF = 0x8000; LF_OFF = 0xC000; TS_OFF = 0x40000
WQT = 0x100000
W1T = 0x400000
W2T = 0xC00000
WOT = 0x1400000
ACT0 = 0x2000000; LSTRIDE = 0x1000000
QF = 0x000000; KF = 0x200000; VF = 0x400000; OF = 0x600000
ST = 0x800000; HT = 0x900000; UF = 0xB00000; X2 = 0xD00000
WS_SIZE = 0x10000000

LDS_TOTAL = 163840
RES = 146432
XA, XB = 92160, 0
QL = 57344
KT, VT = 0, 24576
WOL = 65536
VSC = 149504 - 0
VSC = 92160 + 57344
XA = 88064
VSC = 88064 + 57344
VSC = 57344 + 0

sWG, sX, sM, sW, sLAY = 2, 4, 5, 6, 7
WSR = 's[8:11]'; AR = 's[12:15]'; BR = 's[16:19]'; DBGR = 's[20:23]'
sLOFF, sPH, sSBLK, sDBLK, sMQ, sSPIN, sFAST, sWX = 48, 49, 50, 51, 52, 53, 54, 55
P_X, P_WQKV, P_WO, P_W1, P_B1, P_W2, P_B2 = 64, 66, 68, 72, 74, 76, 78
P_OUT, P_DBG, P_WS = 80, 82, 84
LOG2E = 1.4426950408889634
STAMP_NAMES = {0:'start',1:'W dma landed',2:'W regs+colsum',3:'x flags',4:'x ks0-2 landed',5:'qkv mfma done',6:'qkv stores',7:'qkv signal',8:'pre-att',9:'att poll',10:'kv landed',11:'qk done',12:'att end',13:'att signal',14:'wo poll',15:'wo mfma',16:'stats pub',17:'stats poll',18:'wo end',19:'wo signal',20:'b1 poll',21:'b1 first',22:'b1 mfma',23:'b1 red',24:'b1 end',25:'b1 sig',26:'b2 poll',27:'b2 first',28:'b2 mfma',29:'b2 red',30:'b2 end',31:'b2 sig'}
def f32bits(x): return struct.unpack('<I', struct.pack('<f', x))[0]

XA = 86016
VSC = 143360

class Gen:
    def __init__(self, timing=False, opts=None):
        self.a = Asm(); self.timing = timing; self.o = opts or {}
    def e(self, t): self.a.e(t)
    def L(self, b='L'): return self.a.newlabel(b)

    def srd(self, r, ptr, size, off=None):
        lo = int(r[2:r.index(':')])
        if off is None: self.e(f'  s_mov_b32 s{lo}, s{ptr}\n  s_mov_b32 s{lo+1}, s{ptr+1}')
        else: self.e(f'  s_add_u32 s{lo}, s{ptr}, {off}\n  s_addc_u32 s{lo+1}, s{ptr+1}, 0')
        self.e(f'  s_mov_b32 s{lo+2}, {size}\n  s_mov_b32 s{lo+3}, 0x20000')

    def signal_g(self, ph, vm=0):
        L = self.L('L_sig')
        self.e(f'''
  s_waitcnt vmcnt({vm}) lgkmcnt(0)
  s_barrier
  s_cmp_lg_u32 s{sW}, 0
  s_cbranch_scc1 {L}
  s_add_u32 s24, s{sPH}, {ph}
  s_lshl_b32 s25, s{sWG}, 7
  v_mov_b32 v4, s24
  s_mov_b64 exec, 1
  buffer_store_dword v4, off, {WSR}, s25 sc1
  s_mov_b64 exec, -1
{L}:''')
    def lstore(self, lines):
        La = self.L('L_ls'); Lb = self.L('L_ls')
        self.e(f'  s_cmp_eq_u32 s{sFAST}, 0\n  s_cbranch_scc1 {La}')
        for l in lines: self.e(l)
        self.e(f'  s_branch {Lb}\n{La}:')
        for l in lines: self.e(l + ' sc1' if 'buffer_store' in l else l)
        self.e(f'{Lb}:')
    def local_flag_store(self, vdata, soff):
        self.lstore([f'  buffer_store_dword v{vdata}, off, {WSR}, s{soff}'])
    def signal_l(self, ph, vm=0, pre_barrier=None):
        L = self.L('L_sig')
        self.e(f'  s_waitcnt vmcnt({vm}) lgkmcnt(0)\n  s_barrier')
        if pre_barrier: pre_barrier()
        self.e(f'''
  s_cmp_lg_u32 s{sW}, 0
  s_cbranch_scc1 {L}
  s_add_u32 s24, s{sPH}, {ph}
  s_lshl_b32 s25, s{sX}, 7
  s_lshl_b32 s26, s{sM}, 2
  s_add_u32 s25, s25, s26
  s_add_u32 s25, s25, {LF_OFF}
  v_mov_b32 v4, s24
  s_mov_b64 exec, 1''')
        self.local_flag_store(4, 25)
        self.e(f'  s_mov_b64 exec, -1\n{L}:')
    def poll(self, vaddr, tgt, vtmp=4):
        L = self.L('L_poll'); Ld = self.L('L_polld')
        if isinstance(tgt, int): tgt = f's{tgt}'
        self.e(f'''
  s_mov_b32 s{sSPIN}, 0x400000
{L}:
  buffer_load_dword v{vtmp}, v{vaddr}, {WSR}, 0 offen sc1
  s_waitcnt vmcnt(0)
  v_cmp_gt_u32 vcc, {tgt}, v{vtmp}
  s_cbranch_vccz {Ld}
  s_sub_u32 s{sSPIN}, s{sSPIN}, 1
  s_cmp_lg_u32 s{sSPIN}, 0
  s_cbranch_scc1 {L}
{Ld}:''')
    def wgpoll(self, setup, tgt):
        L = self.L('L_wp')
        self.e(f'  s_cmp_lg_u32 s{sW}, 0\n  s_cbranch_scc1 {L}')
        self.e(setup)
        self.poll(3, tgt)
        self.e(f'{L}:\n  s_barrier')
    def stamp(self, idx):
        if not self.timing: return
        self.e(f'''
  s_memrealtime s[46:47]
  s_waitcnt lgkmcnt(0)
  s_lshl_b32 s45, s{sLAY}, 5
  s_add_u32 s45, s45, {idx}
  s_mov_b32 m0, s45
  v_writelane_b32 v0, s46, m0''')
    def stamp_flush(self):
        if not self.timing: return
        self.e(f'''
  s_lshl_b32 s45, s{sWG}, 3
  s_add_u32 s45, s45, s{sW}
  s_lshl_b32 s45, s45, 8
  s_add_u32 s45, s45, {TS_OFF}
  v_lshlrev_b32 v3, 2, v1
  buffer_store_dword v0, v3, {WSR}, s45 offen''')

    def prologue(self):
        e = self.e
        e(f'''
  s_cmp_ge_u32 s2, 256
  s_cbranch_scc1 L_end
  s_memrealtime s[86:87]
  s_load_dwordx16 s[64:79], s[0:1], 0
  s_load_dwordx4 s[80:83], s[0:1], 64
  s_load_dwordx2 s[84:85], s[0:1], 80
  s_getpc_b64 s[88:89]
  s_and_b32 s{sX}, s2, 7
  s_lshr_b32 s{sM}, s2, 3
  v_lshrrev_b32 v3, 6, v0
  v_and_b32 v1, 63, v0
  v_readfirstlane_b32 s{sW}, v3
  v_lshlrev_b32 v2, 4, v1
  CODEPF
  s_mul_i32 s24, s{sM}, 37
  s_lshr_b32 s{sMQ}, s24, 8
  s_mul_i32 s24, s{sMQ}, 7
  s_sub_u32 s{sDBLK}, s{sM}, s24
  s_lshl_b32 s24, s{sX}, 2
  s_add_u32 s{sSBLK}, s24, s{sMQ}
  s_mov_b32 s{sLAY}, 0
  s_mov_b32 s{sPH}, 0
  s_mov_b32 s{sLOFF}, {ACT0}
  s_mov_b32 s{sFAST}, 0
  v_mov_b32 v0, 0
  s_waitcnt lgkmcnt(0)
  v_writelane_b32 v0, s86, 3''')
        self.srd(WSR, P_WS, WS_SIZE)
        self.srd(DBGR, P_DBG, 256)

    def init_flags(self):
        e = self.e
        L1 = self.L('L_z'); L2 = self.L('L_z')
        e(f'''
  v_mov_b32 v4, 0
  s_cmp_ge_u32 s{sM}, 28
  s_cbranch_scc1 {L1}
  s_and_b32 s24, s{sW}, 3
  s_lshl_b32 s25, s{sSBLK}, 2
  s_add_u32 s24, s24, s25
  s_lshl_b32 s24, s24, 4
  s_lshr_b32 s25, s{sW}, 2
  s_add_u32 s24, s24, s25
  s_lshl_b32 s25, s{sDBLK}, 1
  s_add_u32 s24, s24, s25
  s_lshl_b32 s24, s24, 2
  s_add_u32 s24, s24, {XF_OFF}
  v_lshlrev_b32 v5, 13, v1
  v_add_u32 v5, s24, v5
  s_mov_b64 exec, 3
  buffer_store_dword v4, v5, {WSR}, 0 offen sc1
  s_mov_b64 exec, -1
{L1}:
  s_cmp_lg_u32 s{sW}, 0
  s_cbranch_scc1 {L2}
  s_lshl_b32 s25, s{sWG}, 7
  s_lshl_b32 s26, s{sX}, 7
  s_lshl_b32 s27, s{sM}, 2
  s_add_u32 s26, s26, s27
  s_add_u32 s26, s26, {LF_OFF}
  s_mov_b64 exec, 1
  buffer_store_dword v4, off, {WSR}, s25 sc1
  buffer_store_dword v4, off, {WSR}, s26 sc1
  s_mov_b64 exec, -1
{L2}:''')
    def publish_init(self):
        L3 = self.L('L_z')
        self.e(f'''
  s_cmp_lg_u32 s{sW}, 0
  s_cbranch_scc1 {L3}
  s_getreg_b32 s24, hwreg(HW_REG_XCC_ID)
  s_and_b32 s24, s24, 15
  s_or_b32 s24, s24, 0x80
  v_mov_b32 v4, s24
  s_mov_b64 exec, 1
  buffer_store_byte v4, off, {DBGR}, s{sWG} sc1
  s_mov_b64 exec, -1
{L3}:''')
    def handshake(self, ldsaddr):
        L = self.L('L_hs'); Ld = self.L('L_hsd'); Ls = self.L('L_hss')
        self.e(f'''
  s_cmp_lg_u32 s{sW}, 0
  s_cbranch_scc1 {Ls}
  v_lshlrev_b32 v5, 2, v1
  s_mov_b32 s{sSPIN}, 0x400000
  s_mov_b32 s24, 0x80808080
{L}:
  buffer_load_dword v4, v5, {DBGR}, 0 offen sc1
  s_waitcnt vmcnt(0)
  v_and_b32 v6, s24, v4
  v_cmp_ne_u32 vcc, s24, v6
  s_cbranch_vccz {Ld}
  s_sub_u32 s{sSPIN}, s{sSPIN}, 1
  s_cmp_lg_u32 s{sSPIN}, 0
  s_cbranch_scc1 {L}
{Ld}:
  v_readlane_b32 s24, v4, 0
  v_readlane_b32 s25, v4, 1
  v_and_b32 v6, 1, v1
  v_cmp_eq_u32 vcc, 0, v6
  v_mov_b32 v7, s25
  v_mov_b32 v6, s24
  v_cndmask_b32 v6, v7, v6, vcc
  v_cmp_ne_u32 vcc, v6, v4
  s_cmp_eq_u64 vcc, 0
  s_cselect_b32 s24, {0 if self.o.get('slow') else 1}, 0
  v_mov_b32 v4, s24
  v_mov_b32 v5, {ldsaddr}
  ds_write_b32 v5, v4
{Ls}:''')
    def handshake_read(self, ldsaddr):
        self.e(f'''
  v_mov_b32 v5, {ldsaddr}
  ds_read_b32 v4, v5
  s_waitcnt lgkmcnt(0)
  v_readfirstlane_b32 s{sFAST}, v4''')
    def res_load(self):
        L4 = self.L('L_res')
        self.srd(BR, P_X, S*D*2)
        self.e(f'''
  s_mul_i32 s24, s{sSBLK}, {64*896}
  s_lshl_b32 s25, s{sDBLK}, 7
  s_add_u32 s24, s24, s25
  s_lshl_b32 s25, s{sW}, 4
  s_add_u32 s24, s24, s25
  s_cmp_ge_u32 s{sM}, 28
  s_cselect_b32 s24, 0, s24
  v_mul_u32_u24 v5, 896, v1
  buffer_load_dwordx4 v[32:35], v5, {BR}, s24 offen''')
    def res_store(self):
        self.e(f'''
  v_mul_u32_u24 v6, 272, v1
  s_lshl_b32 s25, s{sW}, 5
  s_add_u32 s25, s25, {RES}
  v_add_u32 v6, s25, v6
  v_lshlrev_b32 v12, 16, v32
  v_and_b32 v13, 0xffff0000, v32
  v_lshlrev_b32 v14, 16, v33
  v_and_b32 v15, 0xffff0000, v33
  v_lshlrev_b32 v16, 16, v34
  v_and_b32 v17, 0xffff0000, v34
  v_lshlrev_b32 v18, 16, v35
  v_and_b32 v19, 0xffff0000, v35
  ds_write_b128 v6, v[12:15]
  ds_write_b128 v6, v[16:19] offset:16''')

    Wq = staticmethod(lambda ks, tt: 88 + (ks*3 + tt)*4)
    def qkv_w0_issue(self):
        e = self.e
        self.srd(AR, P_WQKV, D*3*D*2)
        for p in range(3):
            e(f'''
  v_add_u32 v3, {p*64}, v1
  v_mul_u32_u24 v4, 171, v3
  v_lshrrev_b32 v4, 11, v4
  v_mul_u32_u24 v5, 12, v4
  v_sub_u32 v5, v3, v5
  v_lshrrev_b32 v6, 2, v5
  v_and_b32 v5, 3, v5
  v_bfe_u32 v7, v4, 3, 1
  v_lshlrev_b32 v7, 1, v7
  v_xor_b32 v5, v5, v7
  v_mul_u32_u24 v4, 2688, v4
  v_mul_u32_u24 v6, 896, v6
  v_lshlrev_b32 v5, 4, v5
  v_add3_u32 v{8+p}, v4, v5, v6''')
        Lskip = self.L('L_qw')
        e(f'''
  s_and_b32 s24, s{sM}, 15
  s_mul_i32 s24, s24, 56
  s_mul_i32 s25, s{sW}, {16*2688}
  s_add_u32 s24, s24, s25
  s_mul_i32 s26, s{sW}, 3072''')
        for gi in range(4):
            if gi == 3: e(f'  s_cmp_ge_u32 s{sW}, 4\n  s_cbranch_scc1 {Lskip}')
            for p in range(3):
                e(f'''
  s_add_u32 m0, s26, {gi*8*3072 + p*1024}
  s_add_u32 s27, s24, {gi*8*16*2688}
  buffer_load_dwordx4 v{8+p}, {AR}, s27 offen lds''')
        e(f'{Lskip}:')
    def qkv_w0_finish_a(self):
        e = self.e; Wf = self.Wq
        e(f'''
  v_lshrrev_b32 v3, 4, v1
  v_bfe_u32 v4, v1, 2, 2
  v_lshl_add_u32 v4, v3, 3, v4
  v_mul_u32_u24 v4, 192, v4
  v_and_b32 v5, 1, v1
  v_lshl_add_u32 v4, v5, 3, v4
  v_bfe_u32 v5, v1, 1, 1
  v_and_b32 v6, 1, v3
  v_lshlrev_b32 v6, 1, v6
  v_xor_b32 v5, v5, v6
  v_xor_b32 v6, 2, v5
  v_lshl_add_u32 v24, v5, 4, v4
  v_lshl_add_u32 v25, v6, 4, v4
  s_and_b32 s24, s{sW}, 1
  s_cmp_eq_u32 s24, 0
  s_cselect_b64 vcc, -1, 0
  s_lshl_b32 s25, s24, 6
  v_cndmask_b32 v26, v25, v24, vcc
  v_add_u32 v26, 128, v26
  v_add_u32 v24, s25, v24
  v_add_u32 v25, s25, v25''')
        for ks in range(14):
            if ks == 8: e('  v_add_u32 v24, 49152, v24\n  v_add_u32 v25, 49152, v25\n  v_add_u32 v26, 49152, v26')
            o = (ks % 8)*6144
            for tt in range(3):
                r = Wf(ks, tt)
                e(f'  ds_read_b64_tr_b16 v[{r}:{r+1}], v{24+tt} offset:{o}\n  ds_read_b64_tr_b16 v[{r+2}:{r+3}], v{24+tt} offset:{o+768}')
            if ks % 2 == 1: e('  s_waitcnt lgkmcnt(6)')
        e('  s_waitcnt lgkmcnt(0)\n  s_barrier')
    def qkv_w0_finish_b(self):
        e = self.e; Wf = self.Wq
        e('''
  v_and_b32 v3, 15, v1
  v_cmp_eq_u32 vcc, 12, v3
  v_mov_b32 v4, 0x3f803f80''')
        for ks in range(14):
            r = Wf(ks, 1)
            for k in range(4): e(f'  v_cndmask_b32 v{r+k}, v{r+k}, v4, vcc')
    def qkv_colsum_a(self):
        pass
    def qkv_colsum_b(self):
        e = self.e; Wf = self.Wq
        e('''
  s_nop 4
  v_mov_b32 v84, 0x3f803f80
  v_mov_b32 v85, 0x3f803f80
  v_mov_b32 v86, 0x3f803f80
  v_mov_b32 v87, 0x3f803f80''')
        for ks in range(14):
            for tt in range(3):
                r = Wf(ks, tt); c = 52 + tt*4
                C = '0' if ks == 0 else f'v[{c}:{c+3}]'
                if tt < 2: e(f'  v_mfma_f32_16x16x32_bf16 v[{c}:{c+3}], v[{r}:{r+3}], v[84:87], {C}')
                else: e(f'  v_mfma_f32_16x16x32_bf16 v[{c}:{c+3}], v[84:87], v[{r}:{r+3}], {C}')
    def qkv_w0_save(self):
        e = self.e
        L = self.L('L_qs')
        e(f'''
  s_cmp_ge_u32 s{sW}, 2
  s_cbranch_scc1 {L}
  s_cmp_ge_u32 s{sM}, 16
  s_cbranch_scc1 {L}
  s_cmp_lg_u32 s{sX}, 0
  s_cbranch_scc1 {L}
  s_lshl_b32 s24, s{sM}, 1
  s_add_u32 s24, s24, s{sW}
  s_mul_i32 s24, s24, {45*1024}
  s_add_u32 s24, s24, {WQT}''')
        regs = [88 + 4*n for n in range(42)] + [52, 56, 60]
        for n, r in enumerate(regs):
            e(f'  buffer_store_dwordx4 v[{r}:{r+3}], v2, {WSR}, s24 offen offset:{(n % 4)*1024} sc1')
            if n % 4 == 3: e('  s_add_u32 s24, s24, 4096')
        e(f'{L}:')
    def qkv_w1_issue(self):
        e = self.e
        L = self.L('L_qw1')
        e(f'''
  s_and_b32 s24, s{sM}, 15
  s_mul_i32 s24, s24, {90*1024}
  s_add_u32 s24, s24, {WQT}
  s_and_b32 s25, s{sW}, 1
  s_mul_i32 s27, s25, {45*1024}
  s_add_u32 s24, s24, s27
  s_mul_i32 s26, s25, {42*1024}
  s_add_u32 s28, s24, {42*1024}
  buffer_load_dwordx4 v[52:55], v2, {WSR}, s28 offen sc1
  buffer_load_dwordx4 v[56:59], v2, {WSR}, s28 offen offset:1024 sc1
  buffer_load_dwordx4 v[60:63], v2, {WSR}, s28 offen offset:2048 sc1
  s_lshr_b32 s25, s{sW}, 1             ; i = 0..3 : frags n = i, i+4, ...
  s_lshl_b32 s25, s25, 10
  s_add_u32 s24, s24, s25
  s_add_u32 s26, s26, s25''')
        for n in range(11):
            if n == 10: e(f'  s_cmp_ge_u32 s{sW}, 4\n  s_cbranch_scc1 {L}')
            e(f'''
  s_add_u32 m0, s26, {n*4096}
  s_add_u32 s27, s24, {n*4096}
  buffer_load_dwordx4 v2, {WSR}, s27 offen sc1 lds''')
        e(f'{L}:')
    def qkv_w1_finish(self):
        e = self.e
        e(f'''
  s_and_b32 s24, s{sW}, 1
  s_mul_i32 s24, s24, {42*1024}
  v_add_u32 v24, s24, v2''')
        regs = [88 + 4*n for n in range(42)]
        for n, r in enumerate(regs):
            e(f'  ds_read_b128 v[{r}:{r+3}], v24 offset:{n*1024}')
            if n % 8 == 7: e('  s_waitcnt lgkmcnt(6)')
        e('  s_waitcnt lgkmcnt(0)\n  s_barrier')
    def pi_of(self, dst, src_hi, tmp):
        self.e(f'  v_lshlrev_b32 v{tmp}, 1, v{src_hi}\n  v_mov_b32 v{dst}, 0x78\n  v_lshrrev_b32 v{dst}, v{tmp}, v{dst}\n  v_and_b32 v{dst}, 3, v{dst}')
    def qkv_x_setup(self, layer):
        e = self.e
        if layer == 0:
            self.srd(AR, P_X, S*D*2)
            e('  v_lshrrev_b32 v3, 2, v1\n  v_lshrrev_b32 v4, 2, v3')
            self.pi_of(5, 4, 6)
            e('''
  v_and_b32 v6, 3, v1
  v_xor_b32 v5, v5, v6
  v_mul_u32_u24 v3, 896, v3
  v_lshl_add_u32 v27, v5, 4, v3
  s_mov_b32 s38, 64''')
        else:
            self.srd(AR, P_WS, S*D*2, off=ACT0 + X2)
            e('  v_mov_b32 v27, v2\n  s_mov_b32 s38, 1024')
        e(f'''
  s_lshl_b32 s24, s{sX}, 4
  s_lshr_b32 s25, s{sM}, 4
  s_lshl_b32 s25, s25, 3
  s_add_u32 s24, s24, s25
  s_add_u32 s24, s24, s{sW}
  s_mul_i32 s39, s24, 14336''')
    def qkv_x_dma(self, part, layer):
        e = self.e
        base = XA if part == 0 else XB
        fl = 'sc1 ' if layer else ''
        e(f'  s_mul_i32 s26, s{sW}, 7168\n  s_mul_i32 s27, s38, {7*part}\n  s_add_u32 s27, s27, s39')
        for k in range(7):
            e(f'''
  s_add_u32 m0, s26, {base + k*1024}
  s_nop 0
  buffer_load_dwordx4 v27, {AR}, s27 offen {fl}lds
  s_add_u32 s27, s27, s38''')
    def qkv_main(self):
        e = self.e; Wf = self.Wq
        acc = lambda rt, tt: 64 + (rt*3 + tt)*4
        xf = lambda b, rt: 36 + (b*2 + rt)*4
        GR = 32
        e('  v_and_b32 v3, 15, v1\n  v_lshrrev_b32 v4, 2, v3')
        self.pi_of(5, 4, 6)
        e(f'''
  v_lshrrev_b32 v6, 4, v1
  v_xor_b32 v5, v5, v6
  v_lshl_add_u32 v5, v3, 2, v5
  v_lshlrev_b32 v5, 4, v5
  s_lshr_b32 s24, s{sW}, 1
  s_mul_i32 s24, s24, 14336
  v_add_u32 v29, s24, v5
  v_add_u32 v28, {XA}, v29
  s_and_b32 s31, s{sW}, 1
  s_mul_i32 s25, s31, 7168
  v_add_u32 v30, s25, v28
  v_add_u32 v31, s25, v29''')
        def rd(ks):
            b = ks & 1
            for rt in range(2):
                r = xf(b, rt)
                if ks < 7: e(f'  ds_read_b128 v[{r}:{r+3}], v28 offset:{rt*7168 + ks*1024}')
                else: e(f'  ds_read_b128 v[{r}:{r+3}], v29 offset:{XB + rt*7168 + (ks-7)*1024}')
            g = 16 + 4*b
            if ks < 7: e(f'  ds_read_b128 v[{g}:{g+3}], v30 offset:{ks*1024}')
            else: e(f'  ds_read_b128 v[{g}:{g+3}], v31 offset:{XB + (ks-7)*1024}')
        stages = {0: 11, 3: 7, 7: 3, 11: 0}
        for ks in range(14):
            if ks in stages:
                La = self.L('L_sw'); Lb = self.L('L_sw')
                e(f'  s_waitcnt vmcnt({stages[ks]})\n  s_barrier')
                if ks == 0: self.stamp(4)
                rd(ks)
            if ks + 1 < 14 and (ks + 1) not in stages:
                rd(ks + 1); e('  s_waitcnt lgkmcnt(3)')
            else:
                e('  s_waitcnt lgkmcnt(0)')
            b = ks & 1
            for rt in range(2):
                x = xf(b, rt)
                for tt in range(3):
                    w = Wf(ks, tt); c = acc(rt, tt)
                    C = '0' if ks == 0 else f'v[{c}:{c+3}]'
                    if tt < 2: e(f'  v_mfma_f32_16x16x32_bf16 v[{c}:{c+3}], v[{w}:{w+3}], v[{x}:{x+3}], {C}')
                    else: e(f'  v_mfma_f32_16x16x32_bf16 v[{c}:{c+3}], v[{x}:{x+3}], v[{w}:{w+3}], {C}')
            g = 16 + 4*b
            C = '0' if ks == 0 else f'v[{GR}:{GR+3}]'
            e(f'  v_mfma_f32_16x16x32_bf16 v[{GR}:{GR+3}], v[{g}:{g+3}], v[{g}:{g+3}], {C}')
        self.stamp(5)
        e(f'''
  v_and_b32 v3, 15, v1
  v_and_b32 v4, 3, v3
  v_lshrrev_b32 v5, 2, v3
  v_lshrrev_b32 v6, 4, v1
  v_cmp_eq_u32 s[28:29], 1, v4
  v_cmp_eq_u32 s[32:33], 2, v4
  v_cmp_eq_u32 s[34:35], 3, v4
  v_cmp_eq_u32 s[36:37], v5, v6
  v_cndmask_b32 v7, v{GR}, v{GR+1}, s[28:29]
  v_cndmask_b32 v7, v7, v{GR+2}, s[32:33]
  v_cndmask_b32 v7, v7, v{GR+3}, s[34:35]
  v_cndmask_b32 v7, 0, v7, s[36:37]
  s_cmp_eq_u32 s31, 0
  s_cselect_b64 vcc, -1, 0
  v_cndmask_b32 v8, v{acc(1,1)}, v{acc(0,1)}, vcc
  v_cmp_le_u32 s[28:29], 48, v1
  v_cndmask_b32 v8, 0, v8, s[28:29]
  v_mov_b32 v9, v7
  v_mov_b32 v10, v8
  v_permlane32_swap_b32 v9, v7
  v_permlane32_swap_b32 v10, v8
  v_add_f32 v7, v9, v7
  v_add_f32 v8, v10, v8
  v_mov_b32 v9, v7
  v_mov_b32 v10, v8
  v_permlane16_swap_b32 v9, v7
  v_permlane16_swap_b32 v10, v8
  v_add_f32 v7, v9, v7
  v_add_f32 v8, v10, v8
  s_mov_b32 s24, {f32bits(1.0/448)}
  s_mov_b32 s25, {f32bits(1e-5)}
  v_mul_f32 v8, s24, v8
  v_mul_f32 v7, s24, v7
  v_fma_f32 v7, -v8, v8, v7
  v_max_f32 v7, 0, v7
  v_add_f32 v7, s25, v7
  v_rsq_f32 v9, v7
  s_lshr_b32 s26, s{sW}, 1
  s_lshl_b32 s26, s26, 8
  s_add_u32 s26, s26, {VSC}
  s_lshl_b32 s27, s31, 7
  s_add_u32 s27, s27, s26
  v_lshlrev_b32 v3, 3, v3
  v_add_u32 v4, s27, v3
  v_add_u32 v3, s26, v3
  ds_write_b64 v4, v[8:9]
  v_lshrrev_b32 v4, 4, v1
  v_lshlrev_b32 v4, 5, v4
  v_add_u32 v4, s26, v4
  s_waitcnt lgkmcnt(0)
  s_barrier
  ds_read_b64 v[32:33], v3
  ds_read_b64 v[34:35], v3 offset:128
  ds_read_b128 v[36:39], v4
  ds_read_b128 v[40:43], v4 offset:16
  ds_read_b128 v[44:47], v4 offset:128
  ds_read_b128 v[48:51], v4 offset:144''')
        qs = (DH ** -0.5) * LOG2E
        e(f'''
  s_cmp_eq_u32 s31, 0
  s_cselect_b32 s25, {f32bits(qs)}, 1.0
  s_cselect_b32 s27, 0x3f80, 0
  v_mov_b32 v7, s27
  v_cmp_le_u32 s[28:29], 48, v1
  s_waitcnt lgkmcnt(4)
  v_mul_f32 v5, s25, v33
  v_mul_f32 v6, s25, v35''')
        for rt in range(2):
            mu = 32 + 2*rt; rr = 5 + rt
            for tt in range(2):
                c = acc(rt, tt); cs = 52 + tt*4
                for r in range(4):
                    e(f'  v_fma_f32 v{c+r}, -v{mu}, v{cs+r}, v{c+r}\n  v_mul_f32 v{c+r}, v{rr}, v{c+r}')
            o = 8 + rt*4
            a0, a1 = acc(rt, 0), acc(rt, 1)
            e(f'''
  v_cvt_pk_bf16_f32 v{o}, v{a0}, v{a0+1}
  v_cvt_pk_bf16_f32 v{o+1}, v{a0+2}, v{a0+3}
  v_cvt_pk_bf16_f32 v{o+2}, v{a1}, v{a1+1}
  v_cvt_pk_bf16_f32 v{o+3}, v{a1+2}, v{a1+3}
  v_cndmask_b32 v{o+2}, v{o+2}, v7, s[28:29]
  v_cndmask_b32 v{o+3}, v{o+3}, 0, s[28:29]''')
        La = self.L('L_qk'); Lb = self.L('L_qk')
        e(f'''
  s_and_b32 s24, s{sM}, 15
  s_lshl_b32 s25, s24, 7
  s_lshl_b32 s26, s{sX}, 4
  s_add_u32 s25, s25, s26
  s_lshr_b32 s26, s{sM}, 4
  s_lshl_b32 s26, s26, 3
  s_add_u32 s25, s25, s26
  s_lshr_b32 s26, s{sW}, 1
  s_lshl_b32 s26, s26, 1
  s_add_u32 s25, s25, s26
  s_lshl_b32 s30, s25, 10
  s_add_u32 s30, s30, s{sLOFF}
  s_cmp_eq_u32 s31, 0
  s_cbranch_scc0 {La}
  s_lshl_b32 s26, s26, 10
  s_add_u32 s26, s26, {QL}
  v_add_u32 v3, s26, v2
  ds_write_b128 v3, v[8:11]
  ds_write_b128 v3, v[12:15] offset:1024''')
        if self.o.get('dbgq'):
            e(f'  buffer_store_dwordx4 v[8:11], v2, {WSR}, s30 offen sc1\n  buffer_store_dwordx4 v[12:15], v2, {WSR}, s30 offen offset:1024 sc1')
        e(f'''
  s_branch {Lb}
{La}:
  s_add_u32 s27, s30, {KF}
  buffer_store_dwordx4 v[8:11], v2, {WSR}, s27 offen sc1
  buffer_store_dwordx4 v[12:15], v2, {WSR}, s27 offen offset:1024 sc1
{Lb}:
  s_lshl_b32 s26, s31, 10
  s_add_u32 s27, s30, s26
  s_add_u32 s27, s27, {VF}
  v_and_b32 v3, 15, v1
  v_cmp_le_u32 s[28:29], 12, v3
  s_cmp_eq_u32 s31, 1
  s_cselect_b64 s[28:29], s[28:29], 0
  v_cmp_eq_u32 vcc, 12, v3
  v_mov_b32 v7, 0x3f803f80
  s_nop 0
  v_cndmask_b32 v7, 0, v7, vcc
  s_waitcnt lgkmcnt(0)''')
        for rt in range(2):
            c = acc(rt, 2)
            for r in range(4):
                mu = 36 + rt*8 + 2*r
                e(f'  v_fma_f32 v{c+r}, -v{mu}, v60, v{c+r}\n  v_mul_f32 v{c+r}, v{mu+1}, v{c+r}')
            o = 16 + rt*2
            e(f'''
  v_cvt_pk_bf16_f32 v{o}, v{c}, v{c+1}
  v_cvt_pk_bf16_f32 v{o+1}, v{c+2}, v{c+3}
  v_cndmask_b32 v{o}, v{o}, v7, s[28:29]
  v_cndmask_b32 v{o+1}, v{o+1}, v7, s[28:29]''')
        e(f'  buffer_store_dwordx4 v[16:19], v2, {WSR}, s27 offen sc1')

    def tlb_warm(self):
        e = self.e
        L = self.L('L_tw'); L2 = self.L('L_tw')
        e(f'  s_cmp_lg_u32 s{sW}, 6\n  s_cbranch_scc1 {L}')
        e(f'  v_lshlrev_b32 v3, 21, v1\n  s_mov_b64 exec, 0xffffffff\n  buffer_load_dword v11, v3, {WSR}, 0 offen\n  s_mov_b64 exec, 0xf')
        self.srd(BR, P_W1, S*F*2)
        e(f'  buffer_load_dword v12, v3, {BR}, 0 offen')
        self.srd(BR, P_W2, S*F*2)
        e(f'  s_nop 4\n  buffer_load_dword v13, v3, {BR}, 0 offen\n  s_mov_b64 exec, 1')
        self.srd(BR, P_WO, D*D*2)
        e(f'  buffer_load_dword v14, v3, {BR}, 0 offen')
        self.srd(BR, P_OUT, S*D*2)
        e(f'  buffer_load_dword v15, v3, {BR}, 0 offen\n  s_mov_b64 exec, -1')
        e(f'  s_waitcnt vmcnt(5)\n  s_branch {L2}\n{L}:\n  s_waitcnt vmcnt(0)\n{L2}:')
    def two_addr(self):
        e = self.e
        self.srd(BR, P_WO, D*D*2)
        e(f'''
  s_lshr_b32 s43, s{sWG}, 4
  s_and_b32 s40, s{sWG}, 15
  v_lshrrev_b32 v3, 3, v1
  v_and_b32 v4, 7, v1
  v_bfe_u32 v5, v3, 1, 2
  v_lshlrev_b32 v5, 1, v5
  v_xor_b32 v4, v4, v5
  v_mul_u32_u24 v5, 896, v3
  v_lshl_add_u32 v9, v4, 4, v5
  v_mov_b32 v6, 0x7ff00000
  v_cmp_le_u32 vcc, 4, v3
  s_nop 1
  v_cndmask_b32 v10, v9, v6, vcc
  s_mul_i32 s40, s40, {28*896}
  s_lshl_b32 s43, s43, 7
  s_add_u32 s40, s40, s43
  s_lshl_b32 s59, s{sWG}, 12
  s_add_u32 s59, s59, {WOT}''')
    def two_load(self):
        e = self.e
        L = self.L('L_two')
        e(f'  s_cmp_lg_u32 s{sW}, 7\n  s_cbranch_scc1 {L}\n  s_cmp_ge_u32 s{sWG}, 112\n  s_cbranch_scc1 {L}')
        self.two_addr()
        for n4 in range(4):
            r = 68 + 4*n4
            e(f'  s_add_u32 s27, s40, {n4*8*896}\n  buffer_load_dwordx4 v[{r}:{r+3}], v{10 if n4 == 3 else 9}, {BR}, s27 offen')
        e(f'{L}:')
    def two_process(self):
        e = self.e
        L = self.L('L_two')
        TB = 143360
        e(f'''
  s_cmp_lg_u32 s{sW}, 7
  s_cbranch_scc1 {L}
  s_cmp_ge_u32 s{sWG}, 112
  s_cbranch_scc1 {L}
  v_add_u32 v28, {TB}, v2
  v_lshrrev_b32 v3, 4, v1
  v_bfe_u32 v4, v1, 2, 2
  v_lshl_add_u32 v5, v3, 2, v4
  v_bfe_u32 v6, v5, 1, 2
  v_lshlrev_b32 v5, 7, v5
  v_and_b32 v7, 1, v1
  v_lshl_add_u32 v5, v7, 3, v5
  v_bfe_u32 v7, v1, 1, 1
  v_lshl_add_u32 v5, v7, 4, v5
  v_add_u32 v5, {TB}, v5''')
        wb = [29, 30, 31, 26]
        for nt in range(4):
            e(f'  v_xor_b32 v7, {nt}, v6\n  v_lshl_add_u32 v{wb[nt]}, v7, 5, v5')
        for hf in range(2):
            q0 = 68 + 8*hf
            e(f'  ds_write_b128 v28, v[{q0}:{q0+3}]\n  ds_write_b128 v28, v[{q0+4}:{q0+7}] offset:1024\n  s_waitcnt lgkmcnt(0)')
            for nt in range(4):
                r = 8 + 4*nt + 2*hf
                e(f'  ds_read_b64_tr_b16 v[{r}:{r+1}], v{wb[nt]}')
            e('  s_waitcnt lgkmcnt(0)')
        for nt in range(4):
            e(f'  buffer_store_dwordx4 v[{8+4*nt}:{11+4*nt}], v2, {WSR}, s59 offen offset:{nt*1024} sc1')
        e(f'{L}:')

    def t12_issue(self, touch=False, base=65536):
        e = self.e
        self.srd(AR, P_W1, S*F*2)
        self.srd(BR, P_W2, F*S*2)
        e(f'''
  v_lshrrev_b32 v3, 3, v1
  v_and_b32 v4, 7, v1
  v_bfe_u32 v5, v3, 1, 1
  v_lshlrev_b32 v5, 2, v5
  v_xor_b32 v4, v4, v5
  v_mul_u32_u24 v5, {F*2}, v3
  v_lshl_add_u32 v8, v4, 4, v5
  v_mul_u32_u24 v5, {S*2}, v3
  v_lshl_add_u32 v9, v4, 4, v5
  s_lshr_b32 s30, s{sWG}, 1             ; ks
  s_and_b32 s31, s{sWG}, 1
  s_lshl_b32 s31, s31, 4
  s_lshl_b32 s32, s{sW}, 1
  s_add_u32 s31, s31, s32
  s_mul_i32 s33, s30, {16*F*2}
  s_mul_i32 s34, s31, 112
  s_add_u32 s33, s33, s34               ; w1 src
  s_min_u32 s35, s30, 111
  s_mul_i32 s35, s35, {16*S*2}
  s_lshl_b32 s34, s31, 7
  s_add_u32 s35, s35, s34               ; w2 src
  s_lshl_b32 s26, s{sW}, 13
  s_add_u32 s26, s26, {base}''')
        for b in range(2):
            for n in range(2):
                e(f'''
  {'s_mov_b32 m0, 145408' if touch else f's_add_u32 m0, s26, {b*2048 + n*1024}'}
  s_add_u32 s27, s33, {b*112 + n*8*F*2}
  buffer_load_dwordx4 v8, {AR}, s27 offen lds''')
        for b in range(2):
            for n in range(2):
                e(f'''
  {'s_mov_b32 m0, 145408' if touch else f's_add_u32 m0, s26, {4096 + b*2048 + n*1024}'}
  s_add_u32 s27, s35, {b*128 + n*8*S*2}
  buffer_load_dwordx4 v9, {BR}, s27 offen lds''')
    def t12_process(self, regs0, base=65536, sc='sc1'):
        e = self.e
        e(f'''
  s_lshl_b32 s26, s{sW}, 13
  s_add_u32 s26, s26, {base}
  v_lshrrev_b32 v23, 4, v1
  v_bfe_u32 v24, v1, 2, 2
  v_lshrrev_b32 v25, 1, v23
  v_lshl_add_u32 v25, v25, 3, v24
  v_lshlrev_b32 v25, 7, v25
  v_and_b32 v26, 1, v1
  v_lshl_add_u32 v25, v26, 3, v25
  v_bfe_u32 v26, v1, 1, 1
  v_and_b32 v27, 1, v23
  v_lshl_add_u32 v26, v27, 1, v26
  v_lshl_add_u32 v25, v26, 4, v25
  v_add_u32 v25, s26, v25
  v_lshrrev_b32 v26, 1, v24
  v_lshl_add_u32 v23, v26, 6, v25
  v_xor_b32 v26, 1, v26
  v_lshl_add_u32 v24, v26, 6, v25''')
        for blk in range(4):
            for tl in range(2):
                r = regs0 + (blk*2 + tl)*4
                e(f'  ds_read_b64_tr_b16 v[{r}:{r+1}], v{23+tl} offset:{blk*2048}\n  ds_read_b64_tr_b16 v[{r+2}:{r+3}], v{23+tl} offset:{blk*2048+512}')
        L = self.L('L_t12')
        e(f'''
  s_lshr_b32 s30, s{sWG}, 1
  s_and_b32 s31, s{sWG}, 1
  s_lshl_b32 s31, s31, 4
  s_lshl_b32 s32, s{sW}, 1
  s_add_u32 s31, s31, s32
  s_lshl_b32 s33, s31, 7
  s_add_u32 s33, s33, s30
  s_lshl_b32 s33, s33, 11
  s_add_u32 s33, s33, {W1T}
  s_add_u32 s34, s33, {128*2048}
  s_mul_i32 s35, s31, 112
  s_add_u32 s35, s35, s30
  s_lshl_b32 s35, s35, 11
  s_add_u32 s35, s35, {W2T}
  s_add_u32 s36, s35, {112*2048}
  s_waitcnt lgkmcnt(0)''')
        for b in range(2):
            for tl in range(2):
                r = regs0 + (b*2 + tl)*4
                e(f'  buffer_store_dwordx4 v[{r}:{r+3}], v2, {WSR}, s{33+b} offen offset:{tl*1024} {sc}')
        e(f'  s_cmp_ge_u32 s30, 112\n  s_cbranch_scc1 {L}')
        for b in range(2):
            for tl in range(2):
                r = regs0 + 16 + (b*2 + tl)*4
                e(f'  buffer_store_dwordx4 v[{r}:{r+3}], v2, {WSR}, s{35+b} offen offset:{tl*1024} {sc}')
        e(f'{L}:')

    def w_loads(self, n):
        out = []
        for k in range(n):
            r = 128 + 4*k
            s = f'  buffer_load_dwordx4 v[{r}:{r+3}], v2, {WSR}, s56 offen offset:{(k % 4)*1024} sc1'
            if k % 4 == 3: s += '\n  s_add_u32 s56, s56, 4096'
            out.append(s)
        return out
    def w1_base(self):
        self.e(f'''
  s_lshl_b32 s56, s{sSBLK}, 18
  s_lshl_b32 s57, s{sW}, 15
  s_add_u32 s56, s56, s57
  s_add_u32 s56, s56, {W1T}''')
    def w2_base(self):
        self.e(f'''
  s_mul_i32 s56, s{sSBLK}, {112*2048}
  s_mul_i32 s57, s{sW}, {28*1024}
  s_add_u32 s56, s56, s57
  s_add_u32 s56, s56, {W2T}''')

    def att(self, mid=None, bg=None, hook=None):
        e = self.e
        Sx = lambda n: 32 + 4*n
        NS = 6
        FR = lambda n: 104 + 4*(n % NS)
        e(f'''
  v_and_b32 v16, 15, v1
  v_lshrrev_b32 v17, 4, v1
  v_lshlrev_b32 v17, 2, v17
  v_mov_b32 v18, 0xf149f2ca
  s_and_b32 s35, s{sW}, 1
  s_cmp_eq_u32 s35, 0
  s_cselect_b64 s[36:37], -1, 0''')
        for r in range(4):
            e(f'''
  v_add_u32 v19, {r}, v17
  v_cmp_gt_u32 vcc, v19, v16
  s_nop 1
  v_cndmask_b32 v20, v18, 0, vcc
  v_cndmask_b32 v21, 0, v18, vcc
  v_cndmask_b32 v{Sx(0)+r}, v18, v20, s[36:37]
  v_cndmask_b32 v{Sx(1)+r}, v20, 0, s[36:37]
  v_cndmask_b32 v{Sx(16)+r}, 0, v21, s[36:37]
  v_cndmask_b32 v{Sx(17)+r}, v21, v18, s[36:37]''')
        e(f'''
  s_lshl_b32 s24, s{sX}, 1
  s_lshr_b32 s25, s{sM}, 4
  s_add_u32 s28, s24, s25
  s_and_b32 s29, s{sM}, 15
  s_add_u32 s30, s{sPH}, 1
  s_lshl_b32 s33, s{sW}, 10
  s_add_u32 s33, s33, {QL}
  v_add_u32 v19, s33, v2
  ds_read_b128 v[4:7], v19''')
        self.wgpoll(f'''
  v_min_u32 v3, 2, v1
  v_sub_u32 v3, s28, v3
  v_max_i32 v3, 0, v3
  v_and_b32 v22, 1, v3
  v_lshlrev_b32 v22, 4, v22
  v_add_u32 v22, s29, v22
  v_lshlrev_b32 v22, 3, v22
  v_lshrrev_b32 v3, 1, v3
  v_add_u32 v3, v3, v22
  v_lshlrev_b32 v3, 7, v3
  v_mov_b32 v23, v4''', 30) if False else None
        L = self.L('L_wp')
        e(f'''
  s_cmp_lg_u32 s{sW}, 0
  s_cbranch_scc1 {L}
  v_min_u32 v3, 2, v1
  v_sub_u32 v3, s28, v3
  v_max_i32 v3, 0, v3
  v_and_b32 v22, 1, v3
  v_lshlrev_b32 v22, 4, v22
  v_add_u32 v22, s29, v22
  v_lshlrev_b32 v22, 3, v22
  v_lshrrev_b32 v3, 1, v3
  v_add_u32 v3, v3, v22
  v_lshlrev_b32 v3, 7, v3''')
        self.poll(3, 30, vtmp=22)
        e(f'{L}:\n  s_barrier')
        self.stamp(9)
        e(f'''
  s_lshl_b32 s26, s28, 3
  s_sub_u32 s26, s26, 16
  s_mul_i32 s27, s{sW}, 3
  s_add_u32 s28, s26, s27
  s_lshl_b32 s31, s29, 7
  s_mul_i32 s32, s{sW}, 3072''')
        for n in range(3):
            e(f'''
  s_add_u32 s33, s28, {n}
  s_add_u32 s34, s33, s31
  s_lshl_b32 s34, s34, 10
  s_add_u32 s34, s34, s{sLOFF}
  s_cmp_lt_i32 s33, 0
  s_cselect_b32 s34, 0x7ff00000, s34
  s_add_u32 s38, s34, {KF}
  s_add_u32 m0, s32, {KT + n*1024}
  s_nop 0
  buffer_load_dwordx4 v2, {WSR}, s38 offen sc1 lds
  s_add_u32 s38, s34, {VF}
  s_add_u32 m0, s32, {VT + n*1024}
  s_nop 0
  buffer_load_dwordx4 v2, {WSR}, s38 offen sc1 lds''')
        nmid = mid() if mid else 0
        Lnf = self.L('L_nf')
        if isinstance(nmid, str):
            e(nmid)
        else:
            e(f'  s_waitcnt vmcnt({nmid})')
        e(f'''
  s_cmp_ge_i32 s28, 0
  s_cbranch_scc1 {Lnf}
  v_lshlrev_b32 v19, 4, v16
  v_add_u32 v19, s32, v19
  v_mov_b32 v20, 0xf149
  s_mov_b64 exec, 0xffff''')
        for n in range(3):
            Ln = self.L('L_nf')
            e(f'''
  s_add_u32 s33, s28, {n}
  s_cmp_ge_i32 s33, 0
  s_cbranch_scc1 {Ln}
  ds_write_b32 v19, v20 offset:{KT + n*1024 + 48*16 + 8}
{Ln}:''')
        e(f'''
  s_mov_b64 exec, -1
{Lnf}:
  s_waitcnt lgkmcnt(0)
  s_barrier
  s_lshr_b32 s33, s{sW}, 1
  s_lshl_b32 s33, s33, 11
  v_add_u32 v19, s33, v2''')
        self.stamp(10)
        for n in range(NS):
            e(f'  ds_read_b128 v[{FR(n)}:{FR(n)+3}], v19 offset:{KT + n*1024}')
        order = [('K', n) for n in range(18)] + [('V', n) for n in range(18)]
        nxt = NS
        for n in range(18):
            e(f'  s_waitcnt lgkmcnt({NS-1})')
            C = f'v[{Sx(n)}:{Sx(n)+3}]' if n in (0, 1, 16, 17) else '0'
            e(f'  v_mfma_f32_16x16x32_bf16 v[{Sx(n)}:{Sx(n)+3}], v[{FR(n)}:{FR(n)+3}], v[4:7], {C}')
            kind, idx = order[nxt]
            e(f'  ds_read_b128 v[{FR(nxt)}:{FR(nxt)+3}], v19 offset:{(KT if kind == "K" else VT) + idx*1024}')
            nxt += 1
        self.stamp(11)
        e(f'  v_max3_f32 v20, v32, v33, v34\n  v_max3_f32 v21, v35, v36, v37')
        regs = list(range(38, 32 + 72)); k = 0; t = 0
        while k + 1 < len(regs):
            e(f'  v_max3_f32 v{20+t}, v{20+t}, v{regs[k]}, v{regs[k+1]}'); k += 2; t ^= 1
        e('''
  v_max_f32 v20, v20, v21
  v_mov_b32 v21, v20
  v_permlane32_swap_b32 v21, v20
  v_max_f32 v20, v21, v20
  v_mov_b32 v21, v20
  v_permlane16_swap_b32 v21, v20
  v_max_f32 v20, v21, v20
  v_mov_b32 v21, v20''')
        vn = 0
        bg = list(bg or [])
        for p in range(9):
            b = 32 + 8*p
            if p == 2 and hook: hook()
            for _ in range(2):
                if bg and p >= 3: e(bg.pop(0))
            for r in range(b, b + 8, 2):
                e(f'  v_pk_add_f32 v[{r}:{r+1}], v[{r}:{r+1}], v[20:21] neg_lo:[0,1] neg_hi:[0,1]')
            for r in range(b, b + 8):
                e(f'  v_exp_f32 v{r}, v{r}')
            e(f'''
  v_cvt_pk_bf16_f32 v{b}, v{b}, v{b+1}
  v_cvt_pk_bf16_f32 v{b+1}, v{b+2}, v{b+3}
  v_cvt_pk_bf16_f32 v{b+2}, v{b+4}, v{b+5}
  v_cvt_pk_bf16_f32 v{b+3}, v{b+6}, v{b+7}''')
            for T in range(2):
                c = 8 + 4*T
                C = '0' if p == 0 else f'v[{c}:{c+3}]'
                g = 18 + vn
                remaining = min(NS - 1, 35 - g)
                e(f'  s_waitcnt lgkmcnt({remaining})')
                e(f'  v_mfma_f32_16x16x32_bf16 v[{c}:{c+3}], v[{FR(g)}:{FR(g)+3}], v[{b}:{b+3}], {C}')
                if nxt < 36:
                    kind, idx = order[nxt]
                    e(f'  ds_read_b128 v[{FR(nxt)}:{FR(nxt)+3}], v19 offset:{VT + idx*1024}')
                    nxt += 1
                vn += 1
        e(f'''
  v_mov_b32 v21, v12
  v_mov_b32 v22, v12
  v_permlane32_swap_b32 v21, v22
  v_mov_b32 v21, v22
  v_permlane16_swap_b32 v21, v22
  v_rcp_f32 v22, v22''')
        for r in range(8): e(f'  v_mul_f32 v{8+r}, v{8+r}, v22')
        e(f'''
  v_cvt_pk_bf16_f32 v24, v8, v9
  v_cvt_pk_bf16_f32 v25, v10, v11
  v_cvt_pk_bf16_f32 v26, v12, v13
  v_cvt_pk_bf16_f32 v27, v14, v15
  s_lshl_b32 s24, s{sX}, 1
  s_lshr_b32 s25, s{sM}, 4
  s_add_u32 s24, s24, s25
  s_lshl_b32 s24, s24, 3
  s_add_u32 s24, s24, s{sW}
  s_lshl_b32 s33, s24, 4
  s_add_u32 s33, s33, s29
  s_lshl_b32 s33, s33, 10
  s_add_u32 s33, s33, s{sLOFF}
  s_add_u32 s33, s33, {OF}''')
        self.lstore([f'  buffer_store_dwordx4 v[24:27], v2, {WSR}, s33 offen'])

    def wo_w_dma(self):
        e = self.e
        self.srd(AR, P_WO, D*D*2)
        e(f'''
  v_lshrrev_b32 v23, 3, v1
  v_and_b32 v24, 7, v1
  v_bfe_u32 v25, v23, 1, 2
  v_lshlrev_b32 v25, 1, v25
  v_xor_b32 v24, v24, v25
  v_mul_u32_u24 v25, 896, v23
  v_lshl_add_u32 v26, v24, 4, v25
  v_mov_b32 v24, 0x7ff00000
  v_cmp_le_u32 vcc, 4, v23
  s_mul_i32 s24, s{sW}, {2*28*896}
  s_lshl_b32 s25, s{sDBLK}, 7
  v_cndmask_b32 v27, v26, v24, vcc
  s_add_u32 s24, s24, s25
  s_lshl_b32 s26, s{sW}, 13
  s_add_u32 s26, s26, {WOL}''')
        for hh in range(2):
            for n4 in range(4):
                e(f'''
  s_add_u32 m0, s26, {hh*4096 + n4*1024}
  s_add_u32 s27, s24, {(hh*28 + n4*8)*896}
  buffer_load_dwordx4 v{27 if n4 == 3 else 26}, {AR}, s27 offen lds''')
    def wo_main(self):
        e = self.e
        of = lambda hh: 64 + 4*hh
        acc = lambda nt: 96 + 4*nt
        wf = lambda n: 32 + 4*(n % 8)
        e(f'''
  s_and_b32 s24, s{sW}, 3
  s_lshl_b32 s25, s{sSBLK}, 2
  s_add_u32 s30, s24, s25
  s_lshr_b32 s31, s{sW}, 2
  s_lshl_b32 s28, s31, 3
  s_add_u32 s32, s{sPH}, 2
  v_lshrrev_b32 v3, 4, v1
  v_bfe_u32 v4, v1, 2, 2
  v_lshl_add_u32 v5, v3, 2, v4
  v_bfe_u32 v6, v5, 1, 2
  v_lshlrev_b32 v5, 7, v5
  v_and_b32 v7, 1, v1
  v_lshl_add_u32 v5, v7, 3, v5
  v_bfe_u32 v7, v1, 1, 1
  v_lshl_add_u32 v5, v7, 4, v5
  s_lshl_b32 s24, s31, 15
  s_add_u32 s24, s24, {WOL}
  v_add_u32 v5, s24, v5
  v_xor_b32 v7, 0, v6
  v_lshl_add_u32 v8, v7, 5, v5
  v_xor_b32 v7, 1, v6
  v_lshl_add_u32 v9, v7, 5, v5
  v_xor_b32 v7, 2, v6
  v_lshl_add_u32 v10, v7, 5, v5
  v_xor_b32 v7, 3, v6
  v_lshl_add_u32 v11, v7, 5, v5
  s_lshl_b32 s33, s30, 4
  s_add_u32 s33, s33, s28
  s_lshl_b32 s33, s33, 10
  s_add_u32 s33, s33, s{sLOFF}
  s_add_u32 s33, s33, {OF}''')
        seq = [(hh, nt) for hh in range(8) for nt in range(4)]
        def wrd(n):
            hh, nt = seq[n]; r = wf(n)
            e(f'  ds_read_b64_tr_b16 v[{r}:{r+1}], v{8+nt} offset:{hh*4096}\n  ds_read_b64_tr_b16 v[{r+2}:{r+3}], v{8+nt} offset:{hh*4096+2048}')
        NW = 6
        wf = lambda n: 32 + 4*(n % NW)
        for n in range(NW): wrd(n)
        self.wgpoll(f'''
  s_lshr_b32 s26, s{sSBLK}, 1
  s_and_b32 s27, s26, 1
  s_lshl_b32 s27, s27, 4
  v_and_b32 v3, 15, v1
  v_add_u32 v3, s27, v3
  v_lshlrev_b32 v3, 2, v3
  s_lshl_b32 s26, s{sX}, 7
  s_add_u32 s26, s26, {LF_OFF}
  v_add_u32 v3, s26, v3''', 32)
        self.stamp(14)
        for hh in range(8):
            e(f'  s_add_u32 s34, s33, {hh*1024}\n  buffer_load_dwordx4 v[{of(hh)}:{of(hh)+3}], v2, {WSR}, s34 offen sc1')
        for n, (hh, nt) in enumerate(seq):
            if nt == 0: e(f'  s_waitcnt vmcnt({7 - hh})')
            e(f'  s_waitcnt lgkmcnt({2*min(NW - 1, 31 - n)})')
            c = acc(nt); C = '0' if hh == 0 else f'v[{c}:{c+3}]'
            e(f'  v_mfma_f32_16x16x32_bf16 v[{c}:{c+3}], v[{of(hh)}:{of(hh)+3}], v[{wf(n)}:{wf(n)+3}], {C}')
            if n + NW < 32: wrd(n + NW)
        self.stamp(15)
        La = self.L('L_wo'); Lb = self.L('L_wo')
        e(f'''
  s_lshl_b32 s24, s{sW}, 11
  v_add_u32 v4, s24, v2
  s_xor_b32 s25, s{sW}, 4
  s_lshl_b32 s25, s25, 11
  v_add_u32 v5, s25, v2
  v_lshrrev_b32 v6, 4, v1
  v_lshlrev_b32 v6, 2, v6
  s_and_b32 s24, s{sW}, 3
  s_lshl_b32 s24, s24, 4
  v_add_u32 v6, s24, v6
  v_mul_u32_u24 v6, 272, v6
  v_and_b32 v7, 15, v1
  v_lshl_add_u32 v6, v7, 2, v6
  s_lshl_b32 s24, s31, 7
  s_add_u32 s24, s24, {RES}
  v_add_u32 v6, s24, v6''')
        for t in range(2):
            for r in range(4): e(f'  ds_read_b32 v{112 + t*4 + r}, v6 offset:{r*272 + t*64}')
        e(f'''
  s_cmp_eq_u32 s31, 0
  s_cbranch_scc0 {La}
  ds_write_b128 v4, v[104:107]
  ds_write_b128 v4, v[108:111] offset:1024
  s_branch {Lb}
{La}:
  ds_write_b128 v4, v[96:99]
  ds_write_b128 v4, v[100:103] offset:1024
  s_nop 1
  v_mov_b32 v96, v104
  v_mov_b32 v97, v105
  v_mov_b32 v98, v106
  v_mov_b32 v99, v107
  v_mov_b32 v100, v108
  v_mov_b32 v101, v109
  v_mov_b32 v102, v110
  v_mov_b32 v103, v111
{Lb}:''')
        for k in range(8): e(f'  s_waitcnt lgkmcnt(2)\n  v_add_f32 v{96+k}, v{96+k}, v{112+k}' if k == 0 else f'  v_add_f32 v{96+k}, v{96+k}, v{112+k}')
        e(f'''
  s_waitcnt lgkmcnt(0)
  s_barrier
  ds_read_b128 v[104:107], v5
  ds_read_b128 v[108:111], v5 offset:1024
  s_lshl_b32 s24, s{sDBLK}, 1
  s_add_u32 s24, s24, s31
  s_lshl_b32 s25, s30, 4
  s_add_u32 s26, s25, s24
  s_lshl_b32 s27, s26, 7
  s_add_u32 s27, s27, s{sLOFF}
  s_add_u32 s27, s27, {ST}
  v_lshrrev_b32 v3, 4, v1
  v_lshlrev_b32 v3, 5, v3
  s_lshl_b32 s28, s{sLAY}, 13
  s_add_u32 s28, s28, {XF_OFF}
  s_lshl_b32 s29, s26, 2
  s_add_u32 s29, s29, s28
  s_waitcnt lgkmcnt(0)''')
        for k in range(8): e(f'  v_add_f32 v{96+k}, v{96+k}, v{104+k}')
        for r in range(4):
            e(f'''
  v_add_f32 v{104+2*r}, v{96+r}, v{100+r}
  v_mul_f32 v{105+2*r}, v{96+r}, v{96+r}
  v_fmac_f32 v{105+2*r}, v{100+r}, v{100+r}''')
        for sh in (8, 4, 2, 1):
            for k in range(8): e(f'  v_add_f32 v{104+k}, v{104+k}, v{104+k} row_ror:{sh} row_mask:0xf bank_mask:0xf')
        e(f'''
  v_cmp_eq_u32 vcc, 0, v7
  s_and_saveexec_b64 s[36:37], vcc''')
        self.lstore([f'  buffer_store_dwordx4 v[104:107], v3, {WSR}, s27 offen', f'  buffer_store_dwordx4 v[108:111], v3, {WSR}, s27 offen offset:16'])
        e('  s_mov_b64 exec, s[36:37]')
        for t in range(2):
            for r in range(4): e(f'  ds_write_b32 v6, v{96 + t*4 + r} offset:{r*272 + t*64}')
        e(f'''
  v_mov_b32 v4, 1
  s_lshl_b32 s34, s25, 2
  s_add_u32 s34, s34, s28
  v_min_u32 v5, 13, v1
  v_lshlrev_b32 v5, 2, v5
  v_add_u32 v5, s34, v5
  s_lshl_b32 s27, s25, 7
  s_add_u32 s27, s27, s{sLOFF}
  s_add_u32 s27, s27, {ST}
  v_lshl_add_u32 v8, v7, 7, v3
  v_mov_b32 v9, 0x7ff00000
  v_cmp_le_u32 vcc, 14, v7
  s_nop 1
  v_cndmask_b32 v8, v8, v9, vcc
  s_waitcnt vmcnt(0)
  s_mov_b64 exec, 1''')
        self.local_flag_store(4, 29)
        e('  s_mov_b64 exec, -1')
        self.stamp(16)
        self.poll(5, '1')
        self.stamp(17)
        e(f'''
  buffer_load_dwordx4 v[104:107], v8, {WSR}, s27 offen sc1
  buffer_load_dwordx4 v[108:111], v8, {WSR}, s27 offen offset:16 sc1
  s_mov_b32 s24, {f32bits(1.0/448)}
  s_mov_b32 s25, {f32bits(1e-5)}
  s_waitcnt vmcnt(0)''')
        for sh in (8, 4, 2, 1):
            for k in range(8): e(f'  v_add_f32 v{104+k}, v{104+k}, v{104+k} row_ror:{sh} row_mask:0xf bank_mask:0xf')
        for r in range(4):
            su, sq = 104 + 2*r, 105 + 2*r
            e(f'  v_mul_f32 v{su}, s24, v{su}\n  v_mul_f32 v{sq}, s24, v{sq}')
        for r in range(4):
            su, sq = 104 + 2*r, 105 + 2*r
            e(f'  v_fma_f32 v{sq}, -v{su}, v{su}, v{sq}\n  v_max_f32 v{sq}, 0, v{sq}\n  v_add_f32 v{8+r}, s25, v{sq}')
        for r in range(4): e(f'  v_rsq_f32 v{8+r}, v{8+r}')
        for r in range(4): e(f'  v_mul_f32 v{12+r}, v{8+r}, v{8+r}')
        for r in range(4): e(f'  v_fma_f32 v{12+r}, v{12+r}, v{105+2*r}, s25')
        for r in range(4): e(f'  v_rsq_f32 v{12+r}, v{12+r}')
        for r in range(4): e(f'  v_sub_f32 v{96+r}, v{96+r}, v{104+2*r}\n  v_sub_f32 v{100+r}, v{100+r}, v{104+2*r}')
        for r in range(4): e(f'  v_mul_f32 v{8+r}, v{8+r}, v{12+r}')
        for r in range(4): e(f'  v_mul_f32 v{96+r}, v{96+r}, v{8+r}\n  v_mul_f32 v{100+r}, v{100+r}, v{8+r}')
        e(f'''
  v_cvt_pk_bf16_f32 v16, v96, v97
  v_cvt_pk_bf16_f32 v17, v98, v99
  v_cvt_pk_bf16_f32 v18, v100, v101
  v_cvt_pk_bf16_f32 v19, v102, v103
  s_lshl_b32 s24, s{sDBLK}, 1
  s_add_u32 s24, s24, s31
  s_lshl_b32 s24, s24, 7
  s_add_u32 s24, s24, s30
  s_lshl_b32 s24, s24, 10
  s_add_u32 s24, s24, s{sLOFF}
  s_add_u32 s24, s24, {HT}
  v_permlane16_swap_b32 v16, v18
  v_permlane16_swap_b32 v17, v19
  buffer_store_dwordx4 v[16:19], v2, {WSR}, s24 offen sc1''')

    def b_main(self, which, bg=None, bg_base=None):
        e = self.e
        nks = 16 if which == 1 else 14
        Wf = lambda ks, tl: 128 + (ks*2 + tl)*4
        acc = lambda a, b: 64 + (a*2 + b)*16
        NB = self.o.get('nb', 14)
        Af = lambda n: 8 + 4*(n % NB)
        if which == 1:
            e(f'''
  s_mul_i32 s24, s{sSBLK}, 112
  s_min_u32 s25, s{sW}, 6
  s_lshl_b32 s25, s25, 4
  s_add_u32 s24, s24, s25
  s_load_dwordx4 s[40:43], s[{P_B1}:{P_B1+1}], s24''')
        else:
            self.srd(BR, P_B2, S*2)
            e(f'''
  s_lshl_b32 s24, s{sSBLK}, 7
  v_lshlrev_b32 v5, 1, v1
  buffer_load_ushort v240, v5, {BR}, s24 offen''')
        NT = 128 if which == 1 else 112
        e(f'''
  s_add_u32 s32, s{sPH}, {3 if which == 1 else 4}
  s_lshl_b32 s34, s{sDBLK}, 1
  s_mul_i32 s34, s34, {NT}
  s_mul_i32 s25, s{sW}, {nks}
  s_add_u32 s34, s34, s25
  s_lshl_b32 s34, s34, 10
  s_add_u32 s34, s34, s{sLOFF}
  s_add_u32 s34, s34, {HT if which == 1 else UF}
  s_add_u32 s35, s34, {NT*1024}''')
        self.wgpoll(f'''
  v_and_b32 v3, 3, v1
  v_mul_u32_u24 v3, 7, v3
  v_add_u32 v3, s{sDBLK}, v3
  v_lshlrev_b32 v3, 3, v3
  v_bfe_u32 v5, v1, 2, 3
  v_add_u32 v3, v5, v3
  v_lshlrev_b32 v3, 7, v3''', 32)
        self.stamp(20 if which == 1 else 26)
        if self.o.get('prio'):
            Lp = self.L('L_pr')
            e(f'  s_cmp_lt_u32 s{sW}, 4\n  s_cbranch_scc1 {Lp}\n  s_setprio {self.o["prio"]}\n{Lp}:')
        nfr = 2*nks
        def ld(n):
            ks, dt = n // 2, n % 2
            r = Af(n)
            e(f'  buffer_load_dwordx4 v[{r}:{r+3}], v2, {WSR}, s{34+dt} offen offset:{(ks % 4)*1024} sc1')
            if dt == 1 and ks % 4 == 3: e('  s_add_u32 s34, s34, 4096\n  s_add_u32 s35, s35, 4096')
        issued = 0
        while issued < min(NB, nfr):
            ld(issued); issued += 1
        for ks in range(nks):
            e(f'  s_waitcnt vmcnt({issued - (2*ks + 2)})')
            if ks == 0: self.stamp(21 if which == 1 else 27)
            for dt in range(2):
                x = Af(2*ks + dt)
                for tl in range(2):
                    w = Wf(ks, tl)
                    if which == 1:
                        c = acc(tl, dt); C = '0' if ks == 0 else f'v[{c}:{c+15}]'
                        e(f'  v_mfma_f32_32x32x16_bf16 v[{c}:{c+15}], v[{w}:{w+3}], v[{x}:{x+3}], {C}')
                    else:
                        c = acc(dt, tl); C = '0' if ks == 0 else f'v[{c}:{c+15}]'
                        e(f'  v_mfma_f32_32x32x16_bf16 v[{c}:{c+15}], v[{x}:{x+3}], v[{w}:{w+3}], {C}')
            for _ in range(2):
                if issued < nfr:
                    ld(issued); issued += 1
        if self.o.get('prio'): e('  s_setprio 0')
        self.stamp(22 if which == 1 else 28)
        e(f'''
  v_and_b32 v3, 31, v1
  v_mul_u32_u24 v3, 272, v3
  v_lshrrev_b32 v4, 5, v1
  v_lshl_add_u32 v3, v4, 4, v3
  s_mul_i32 s24, s{sW}, 17408
  v_add_u32 v3, s24, v3''')
        for a in range(2):
            for b in range(2):
                c = acc(a, b)
                for q in range(4):
                    e(f'  ds_write_b128 v3, v[{c+4*q}:{c+4*q+3}] offset:{b*32*272 + a*128 + q*32}')
        e(f'''
  v_mul_u32_u24 v3, 272, v1
  s_lshl_b32 s24, s{sW}, 5
  v_add_u32 v3, s24, v3
  v_add_u32 v5, 69632, v3
  s_waitcnt lgkmcnt(0)
  s_barrier''')
        for p in range(8):
            r = 8 + p*8
            base = 3 if p < 4 else 5
            o = (p % 4)*17408
            e(f'  ds_read_b128 v[{r}:{r+3}], v{base} offset:{o}\n  ds_read_b128 v[{r+4}:{r+7}], v{base} offset:{o+16}')
        if which == 2:
            e(f'  v_add_u32 v6, {RES}, v3\n  ds_read_b128 v[72:75], v6\n  ds_read_b128 v[76:79], v6 offset:16')
        extra = 2 if which == 2 else 0
        bg = list(bg or [])
        if bg_base: bg_base()
        for p in range(1, 8):
            if bg: e(bg.pop(0))
            e(f'  s_waitcnt lgkmcnt({min(15, (7 - p)*2 + extra)})')
            for k in range(8): e(f'  v_add_f32 v{8+k}, v{8+k}, v{8+p*8+k}')
        e('  s_waitcnt lgkmcnt(0)')
        for l in bg: e(l)
        self.stamp(23 if which == 1 else 29)
        if which == 1:
            c0 = -2.0*LOG2E*math.sqrt(2.0/math.pi); c1 = c0*0.044715
            e(f'  s_mov_b32 s24, {f32bits(c0)}\n  s_mov_b32 s25, {f32bits(c1)}')
            for k in range(8):
                src = 40 + k//2
                if k % 2 == 0: e(f'  s_lshl_b32 s26, s{src}, 16')
                else: e(f'  s_and_b32 s26, s{src}, 0xffff0000')
                e(f'  v_add_f32 v{8+k}, s26, v{8+k}')
            for k in range(8): e(f'  v_mul_f32 v{16+k}, v{8+k}, v{8+k}\n  v_mov_b32 v{24+k}, s24')
            for k in range(8): e(f'  v_fmac_f32 v{24+k}, s25, v{16+k}')
            for k in range(8): e(f'  v_mul_f32 v{24+k}, v{24+k}, v{8+k}')
            for k in range(8): e(f'  v_exp_f32 v{24+k}, v{24+k}')
            for k in range(8): e(f'  v_add_f32 v{24+k}, 1.0, v{24+k}')
            for k in range(8): e(f'  v_rcp_f32 v{24+k}, v{24+k}')
            for k in range(8): e(f'  v_mul_f32 v{8+k}, v{8+k}, v{24+k}')
            Ls = self.L('L_b1')
            e(f'''
  v_cvt_pk_bf16_f32 v16, v8, v9
  v_cvt_pk_bf16_f32 v17, v10, v11
  v_cvt_pk_bf16_f32 v18, v12, v13
  v_cvt_pk_bf16_f32 v19, v14, v15
  s_mul_i32 s24, s{sSBLK}, 7
  s_add_u32 s24, s24, s{sW}
  s_lshr_b32 s25, s24, 1
  s_and_b32 s24, s24, 1
  s_lshl_b32 s26, s{sDBLK}, 1
  s_mul_i32 s26, s26, 112
  s_add_u32 s26, s26, s25
  s_lshl_b32 s26, s26, 10
  s_lshl_b32 s24, s24, 9
  s_add_u32 s26, s26, s24
  s_add_u32 s26, s26, s{sLOFF}
  s_add_u32 s26, s26, {UF}
  v_and_b32 v3, 31, v1
  v_lshlrev_b32 v3, 4, v3
  v_lshrrev_b32 v4, 5, v1
  v_mul_u32_u24 v4, {112*1024}, v4
  v_add_u32 v3, v3, v4
  s_cmp_eq_u32 s{sW}, 7
  s_cbranch_scc1 {Ls}
  buffer_store_dwordx4 v[16:19], v3, {WSR}, s26 offen sc1
{Ls}:''')
        else:
            e('  v_lshlrev_b32 v4, 16, v240')
            for k in range(8): e(f'  v_add_f32 v{8+k}, v{8+k}, v4\n  v_add_f32 v{8+k}, v{8+k}, v{72+k}')
            La = self.L('L_b2'); Lb = self.L('L_b2')
            e(f'''
  ds_write_b128 v6, v[8:11]
  ds_write_b128 v6, v[12:15] offset:16
  v_cvt_pk_bf16_f32 v16, v8, v9
  v_cvt_pk_bf16_f32 v17, v10, v11
  v_cvt_pk_bf16_f32 v18, v12, v13
  v_cvt_pk_bf16_f32 v19, v14, v15
  s_cmp_eq_u32 s{sLAY}, 0
  s_cbranch_scc0 {La}
  v_and_b32 v3, 15, v1
  v_lshrrev_b32 v4, 2, v3''')
            self.pi_of(5, 4, 7)
            e(f'''
  s_and_b32 s24, s{sW}, 3
  v_xor_b32 v5, s24, v5
  v_lshl_add_u32 v5, v3, 2, v5
  v_lshlrev_b32 v5, 4, v5
  v_lshrrev_b32 v4, 4, v1
  v_mul_u32_u24 v4, 14336, v4
  v_add_u32 v5, v5, v4
  s_lshl_b32 s24, s{sSBLK}, 2
  s_mul_i32 s24, s24, 14
  s_lshl_b32 s25, s{sDBLK}, 1
  s_add_u32 s24, s24, s25
  s_lshr_b32 s25, s{sW}, 2
  s_add_u32 s24, s24, s25
  s_lshl_b32 s24, s24, 10
  s_add_u32 s24, s24, {ACT0 + X2}''')
            self.lstore([f'  buffer_store_dwordx4 v[16:19], v5, {WSR}, s24 offen'])
            e(f'  s_branch {Lb}\n{La}:')
            self.srd(BR, P_OUT, S*D*2)
            e(f'''
  s_mul_i32 s24, s{sSBLK}, {64*896}
  s_lshl_b32 s25, s{sDBLK}, 7
  s_add_u32 s24, s24, s25
  s_lshl_b32 s25, s{sW}, 4
  s_add_u32 s24, s24, s25
  v_mul_u32_u24 v5, 896, v1
  buffer_store_dwordx4 v[16:19], v5, {BR}, s24 offen
{Lb}:''')

    def build(self):
        e = self.e
        self.prologue()
        self.qkv_w0_issue()
        self.qkv_x_setup(0)
        self.qkv_x_dma(0, 0)
        self.stamp(0)
        self.tlb_warm()
        e('  s_barrier')
        self.publish_init()
        self.stamp(1)
        e('L_qkv_w:')
        self.qkv_w0_finish_a()
        self.qkv_x_dma(1, 1)
        self.qkv_w0_finish_b()
        self.qkv_colsum_b()
        self.stamp(2)
        e('  s_branch L_qkv_main')
        e('L_layer:')
        self.stamp(0)
        self.qkv_w0_issue()
        self.qkv_x_setup(1)
        self.wgpoll(f'''
  v_min_u32 v3, 13, v1
  s_lshr_b32 s24, s{sM}, 4
  s_mul_i32 s24, s24, 14
  v_add_u32 v3, s24, v3
  v_lshlrev_b32 v3, 2, v3
  s_lshl_b32 s24, s{sX}, 7
  s_add_u32 s24, s24, {LF_OFF}
  v_add_u32 v3, s24, v3''', sPH)
        self.stamp(3)
        self.qkv_x_dma(0, 1)
        e('  s_waitcnt vmcnt(7)\n  s_barrier')
        self.stamp(1)
        e('  s_branch L_qkv_w')
        e('L_qkv_main:')
        self.qkv_main()
        self.stamp(6)
        self.signal_g(1)
        self.stamp(7)
        Lh2 = self.L('L_h')
        e(f'  s_cmp_lg_u32 s{sLAY}, 0\n  s_cbranch_scc1 {Lh2}')
        self.res_load()
        self.handshake(VSC + 1024)
        e('  s_waitcnt vmcnt(0) lgkmcnt(0)\n  s_barrier')
        self.res_store()
        self.handshake_read(VSC + 1024)
        e(f'{Lh2}:')
        self.stamp(8)
        w1 = self.w_loads(32)
        self.w1_base()
        def att_hook():
            Lc = self.L('L_am')
            e(f'  s_cmp_ge_u32 s{sM}, 28\n  s_cbranch_scc1 {Lc}')
            self.wo_w_dma()
            e(f'{Lc}:')
        bg = list(w1[:12])
        self.att(mid=None, bg=bg, hook=att_hook)
        self.stamp(12)
        self.signal_l(2)
        self.stamp(13)
        e(f'  s_cmp_ge_u32 s{sM}, 28\n  s_cbranch_scc1 L_idle')
        self.wo_main()
        self.stamp(18)
        self.signal_g(3)
        self.stamp(19)
        for l in w1[12:]: e(l)
        w2 = self.w_loads(28)
        self.b_main(1, bg=w2[:8], bg_base=self.w2_base)
        self.stamp(24)
        self.signal_g(4)
        self.stamp(25)
        for l in w2[8:]: e(l)
        self.b_main(2)
        self.stamp(30)
        self.signal_l(5)
        self.stamp(31)
        e('  s_branch L_skip\nL_idle:')
        e(f'  s_cmp_lg_u32 s{sLAY}, 0\n  s_cbranch_scc1 L_skip\n  s_add_u32 s32, s{sPH}, 5')
        self.wgpoll(f'''
  v_min_u32 v3, 13, v1
  s_lshr_b32 s24, s{sM}, 4
  s_mul_i32 s24, s24, 14
  v_add_u32 v3, s24, v3
  v_lshlrev_b32 v3, 2, v3
  s_lshl_b32 s24, s{sX}, 7
  s_add_u32 s24, s24, {LF_OFF}
  v_add_u32 v3, s24, v3''', 32)
        e('L_skip:')
        e(f'''
  s_add_u32 s{sLAY}, s{sLAY}, 1
  s_add_u32 s{sPH}, s{sPH}, 5
  s_add_u32 s{sLOFF}, s{sLOFF}, {LSTRIDE}
  s_cmp_lt_u32 s{sLAY}, 2
  s_cbranch_scc1 L_layer''')
        self.stamp_flush()
        e('L_end:\n  s_endpgm')
        return self.finish()

    def build_prep(self):
        e = self.e
        e(f'''
  s_cmp_ge_u32 s2, 256
  s_cbranch_scc1 LP_end
  s_load_dwordx16 s[64:79], s[0:1], 0
  s_load_dwordx2 s[84:85], s[0:1], 80
  v_lshrrev_b32 v3, 6, v0
  v_and_b32 v1, 63, v0
  v_readfirstlane_b32 s{sW}, v3
  v_lshlrev_b32 v2, 4, v1
  s_waitcnt lgkmcnt(0)''')
        self.srd(WSR, P_WS, WS_SIZE)
        self.t12_issue(base=0)
        L = self.L('LP_z')
        e(f'''
  s_cmp_lg_u32 s{sW}, 0
  s_cbranch_scc1 {L}
  v_mov_b32 v12, 0
  v_mov_b32 v13, 0
  v_mov_b32 v14, 0
  v_mov_b32 v15, 0
  s_lshl_b32 s24, s{sWG}, 8
  s_mov_b64 exec, 0xffff
  buffer_store_dwordx4 v[12:15], v2, {WSR}, s24 offen
  s_mov_b64 exec, -1
{L}:
  s_waitcnt vmcnt(0)''')
        self.t12_process(32, base=0, sc='')
        e('LP_end:\n  s_endpgm')
    def finish(self):
        body = self.a.text()
        g2 = Gen(False, self.o); g2.a.uid = 100000
        g2.build_prep()
        prep = g2.a.text()
        pf = ''
        if self.o.get('codepf', 1):
            pf = f'''  s_lshl_b32 s24, s{sM}, 3
  s_add_u32 s24, s24, s{sW}
  s_lshl_b32 s24, s24, 7
  s_cmp_ge_u32 s24, L_end-{NAME}_kernel-128
  s_cbranch_scc1 L_nopf
  v_add_u32 v4, s24, v2
  s_mov_b64 exec, 0xff
  global_load_dwordx4 v[124:127], v4, s[88:89]
  s_mov_b64 exec, -1
L_nopf:'''
        body = body.replace('  CODEPF', pf)
        head = open(f'cdna_kernels/{NAME}.s.ref').read().split('; Override launch')[0]
        KD = lambda nm, vg: f'''.p2align 6
.amdhsa_kernel {nm}
  .amdhsa_next_free_vgpr {vg}
  .amdhsa_next_free_sgpr 102
  .amdhsa_accum_offset {vg}
  .amdhsa_group_segment_fixed_size 0
  .amdhsa_kernarg_size 88
  .amdhsa_user_sgpr_count 2
  .amdhsa_user_sgpr_kernarg_segment_ptr 1
  .amdhsa_system_sgpr_workgroup_id_x 1
.end_amdhsa_kernel
'''
        return head + f'''; @launch kernel=prep_kernel grid=(256,1,1) block=(512,1,1) lds=65536
; @launch kernel={NAME}_kernel grid=(256,1,1) block=(512,1,1) lds={LDS_TOTAL}
.amdgcn_target "amdgcn-amd-amdhsa--gfx950"
.text
.globl prep_kernel
.p2align 8
.type prep_kernel,@function
prep_kernel:
''' + prep + f'''.globl {NAME}_kernel
.p2align 8
.type {NAME}_kernel,@function
{NAME}_kernel:
''' + body + '.section .rodata,"a"\n' + KD('prep_kernel', 64) + KD(NAME + '_kernel', 256)

if __name__ == '__main__':
    import argparse
    ap = argparse.ArgumentParser()
    ap.add_argument('--timing', action='store_true')
    ap.add_argument('--slow', action='store_true')
    ap.add_argument('--dbgq', action='store_true')
    ap.add_argument('--nb', type=int, default=14)
    ap.add_argument('--prio', type=int, default=0)
    ap.add_argument('-o', default=f'cdna_kernels/{NAME}.s')
    args = ap.parse_args()
    open(args.o, 'w').write(Gen(args.timing, dict(slow=args.slow, dbgq=args.dbgq, nb=args.nb, prio=args.prio)).build())
    print('wrote', args.o)
```

```python
import sys, math, struct
sys.path.insert(0, 'gen')
from asmlib import Asm

NAME = 'interleave_layers__sliding_block__mixer_token_mlp__prompt'
S, D, H, DH, F = 2048, 448, 16, 28, 1792

GF_OFF = 0; XF_OFF = 0x8000; LF_OFF = 0xC000; TS_OFF = 0x40000
WQT = 0x100000
W1T = 0x400000
W2T = 0xC00000
WOT = 0x1400000
ACT0 = 0x2000000; LSTRIDE = 0x1000000
QF = 0x000000; KF = 0x200000; VF = 0x400000; OF = 0x600000
ST = 0x800000; HT = 0x900000; UF = 0xB00000; X2 = 0xD00000
WS_SIZE = 0x10000000

LDS_TOTAL = 163840
RES = 146432
XA, XB = 92160, 0
QL = 57344
KT, VT = 0, 24576
WOL = 65536
VSC = 149504 - 0
VSC = 92160 + 57344
XA = 88064
VSC = 88064 + 57344
VSC = 57344 + 0

sWG, sX, sM, sW, sLAY = 2, 4, 5, 6, 7
WSR = 's[8:11]'; AR = 's[12:15]'; BR = 's[16:19]'; DBGR = 's[20:23]'
sLOFF, sPH, sSBLK, sDBLK, sMQ, sSPIN, sFAST, sWX = 48, 49, 50, 51, 52, 53, 54, 55
P_X, P_WQKV, P_WO, P_W1, P_B1, P_W2, P_B2 = 64, 66, 68, 72, 74, 76, 78
P_OUT, P_DBG, P_WS = 80, 82, 84
LOG2E = 1.4426950408889634
STAMP_NAMES = {0:'start',1:'W dma landed',2:'W regs+colsum',3:'x flags',4:'x ks0-2 landed',5:'qkv mfma done',6:'qkv stores',7:'qkv signal',8:'pre-att',9:'att poll',10:'kv landed',11:'qk done',12:'att end',13:'att signal',14:'wo poll',15:'wo mfma',16:'stats pub',17:'stats poll',18:'wo end',19:'wo signal',20:'b1 poll',21:'b1 first',22:'b1 mfma',23:'b1 red',24:'b1 end',25:'b1 sig',26:'b2 poll',27:'b2 first',28:'b2 mfma',29:'b2 red',30:'b2 end',31:'b2 sig'}
def f32bits(x): return struct.unpack('<I', struct.pack('<f', x))[0]

XA = 86016
VSC = 143360

class Gen:
    def __init__(self, timing=False, opts=None):
        self.a = Asm(); self.timing = timing; self.o = opts or {}
    def e(self, t): self.a.e(t)
    def L(self, b='L'): return self.a.newlabel(b)

    def srd(self, r, ptr, size, off=None):
        lo = int(r[2:r.index(':')])
        if off is None: self.e(f'  s_mov_b32 s{lo}, s{ptr}\n  s_mov_b32 s{lo+1}, s{ptr+1}')
        else: self.e(f'  s_add_u32 s{lo}, s{ptr}, {off}\n  s_addc_u32 s{lo+1}, s{ptr+1}, 0')
        self.e(f'  s_mov_b32 s{lo+2}, {size}\n  s_mov_b32 s{lo+3}, 0x20000')

    def signal_g(self, ph, vm=0):
        L = self.L('L_sig')
        self.e(f'''
  s_waitcnt vmcnt({vm}) lgkmcnt(0)
  s_barrier
  s_cmp_lg_u32 s{sW}, 0
  s_cbranch_scc1 {L}
  s_add_u32 s24, s{sPH}, {ph}
  s_lshl_b32 s25, s{sWG}, 7
  v_mov_b32 v4, s24
  s_mov_b64 exec, 1
  buffer_store_dword v4, off, {WSR}, s25 sc1
  s_mov_b64 exec, -1
{L}:''')
    def lstore(self, lines):
        La = self.L('L_ls'); Lb = self.L('L_ls')
        self.e(f'  s_cmp_eq_u32 s{sFAST}, 0\n  s_cbranch_scc1 {La}')
        for l in lines: self.e(l)
        self.e(f'  s_branch {Lb}\n{La}:')
        for l in lines: self.e(l + ' sc1' if 'buffer_store' in l else l)
        self.e(f'{Lb}:')
    def local_flag_store(self, vdata, soff):
        self.lstore([f'  buffer_store_dword v{vdata}, off, {WSR}, s{soff}'])
    def signal_l(self, ph, vm=0, pre_barrier=None):
        L = self.L('L_sig')
        self.e(f'  s_waitcnt vmcnt({vm}) lgkmcnt(0)\n  s_barrier')
        if pre_barrier: pre_barrier()
        self.e(f'''
  s_cmp_lg_u32 s{sW}, 0
  s_cbranch_scc1 {L}
  s_add_u32 s24, s{sPH}, {ph}
  s_lshl_b32 s25, s{sX}, 7
  s_lshl_b32 s26, s{sM}, 2
  s_add_u32 s25, s25, s26
  s_add_u32 s25, s25, {LF_OFF}
  v_mov_b32 v4, s24
  s_mov_b64 exec, 1''')
        self.local_flag_store(4, 25)
        self.e(f'  s_mov_b64 exec, -1\n{L}:')
    def poll(self, vaddr, tgt, vtmp=4):
        L = self.L('L_poll'); Ld = self.L('L_polld')
        if isinstance(tgt, int): tgt = f's{tgt}'
        self.e(f'''
  s_mov_b32 s{sSPIN}, 0x20000
{L}:
  buffer_load_dword v{vtmp}, v{vaddr}, {WSR}, 0 offen sc1
  s_waitcnt vmcnt(0)
  v_cmp_gt_u32 vcc, {tgt}, v{vtmp}
  s_cbranch_vccz {Ld}
  s_sub_u32 s{sSPIN}, s{sSPIN}, 1
  s_cmp_lg_u32 s{sSPIN}, 0
  s_cbranch_scc1 {L}
{Ld}:''')
    def wgpoll(self, setup, tgt):
        L = self.L('L_wp')
        self.e(f'  s_cmp_lg_u32 s{sW}, 0\n  s_cbranch_scc1 {L}')
        self.e(setup)
        self.poll(3, tgt)
        self.e(f'{L}:\n  s_barrier')
    def stamp(self, idx):
        if not self.timing: return
        self.e(f'''
  s_memrealtime s[46:47]
  s_waitcnt lgkmcnt(0)
  s_lshl_b32 s45, s{sLAY}, 5
  s_add_u32 s45, s45, {idx}
  s_mov_b32 m0, s45
  v_writelane_b32 v0, s46, m0''')
    def stamp_flush(self):
        if not self.timing: return
        self.e(f'''
  s_lshl_b32 s45, s{sWG}, 3
  s_add_u32 s45, s45, s{sW}
  s_lshl_b32 s45, s45, 8
  s_add_u32 s45, s45, {TS_OFF}
  v_lshlrev_b32 v3, 2, v1
  buffer_store_dword v0, v3, {WSR}, s45 offen''')

    def prologue(self):
        e = self.e
        e(f'''
  s_cmp_ge_u32 s2, 256
  s_cbranch_scc1 L_end
  s_memrealtime s[86:87]
  s_load_dwordx16 s[64:79], s[0:1], 0
  s_load_dwordx4 s[80:83], s[0:1], 64
  s_load_dwordx2 s[84:85], s[0:1], 80
  s_getpc_b64 s[88:89]
  s_and_b32 s{sX}, s2, 7
  s_lshr_b32 s{sM}, s2, 3
  v_lshrrev_b32 v3, 6, v0
  v_and_b32 v1, 63, v0
  v_readfirstlane_b32 s{sW}, v3
  v_lshlrev_b32 v2, 4, v1
  CODEPF
  s_mul_i32 s24, s{sM}, 37
  s_lshr_b32 s{sMQ}, s24, 8
  s_mul_i32 s24, s{sMQ}, 7
  s_sub_u32 s{sDBLK}, s{sM}, s24
  s_lshl_b32 s24, s{sX}, 2
  s_add_u32 s{sSBLK}, s24, s{sMQ}
  s_mov_b32 s{sLAY}, 0
  s_mov_b32 s{sPH}, 0
  s_mov_b32 s{sLOFF}, {ACT0}
  s_mov_b32 s{sFAST}, 0
  s_and_b32 s61, s{sM}, 15
  v_mov_b32 v0, 0
  s_waitcnt lgkmcnt(0)
  v_writelane_b32 v0, s86, 3''')
        self.srd(WSR, P_WS, WS_SIZE)
        self.srd(DBGR, P_DBG, 256)

    def init_flags(self):
        e = self.e
        L1 = self.L('L_z'); L2 = self.L('L_z')
        e(f'''
  v_mov_b32 v4, 0
  s_cmp_ge_u32 s{sM}, 28
  s_cbranch_scc1 {L1}
  s_and_b32 s24, s{sW}, 3
  s_lshl_b32 s25, s{sSBLK}, 2
  s_add_u32 s24, s24, s25
  s_lshl_b32 s24, s24, 4
  s_lshr_b32 s25, s{sW}, 2
  s_add_u32 s24, s24, s25
  s_lshl_b32 s25, s{sDBLK}, 1
  s_add_u32 s24, s24, s25
  s_lshl_b32 s24, s24, 2
  s_add_u32 s24, s24, {XF_OFF}
  v_lshlrev_b32 v5, 13, v1
  v_add_u32 v5, s24, v5
  s_mov_b64 exec, 3
  buffer_store_dword v4, v5, {WSR}, 0 offen sc1
  s_mov_b64 exec, -1
{L1}:
  s_cmp_lg_u32 s{sW}, 0
  s_cbranch_scc1 {L2}
  s_lshl_b32 s25, s{sWG}, 7
  s_lshl_b32 s26, s{sX}, 7
  s_lshl_b32 s27, s{sM}, 2
  s_add_u32 s26, s26, s27
  s_add_u32 s26, s26, {LF_OFF}
  s_mov_b64 exec, 1
  buffer_store_dword v4, off, {WSR}, s25 sc1
  buffer_store_dword v4, off, {WSR}, s26 sc1
  s_mov_b64 exec, -1
{L2}:''')
    def publish_init(self):
        L3 = self.L('L_z')
        self.e(f'''
  s_cmp_lg_u32 s{sW}, 0
  s_cbranch_scc1 {L3}
  s_getreg_b32 s24, hwreg(HW_REG_XCC_ID)
  s_and_b32 s24, s24, 15
  s_or_b32 s24, s24, 0x80
  v_mov_b32 v4, s24
  s_mov_b64 exec, 1
  buffer_store_byte v4, off, {DBGR}, s{sWG} sc1
  s_mov_b64 exec, -1
{L3}:''')
    def handshake(self, ldsaddr):
        L = self.L('L_hs'); Ld = self.L('L_hsd'); Ls = self.L('L_hss')
        self.e(f'''
  s_cmp_lg_u32 s{sW}, 0
  s_cbranch_scc1 {Ls}
  v_lshlrev_b32 v5, 2, v1
  s_mov_b32 s{sSPIN}, 0x20000
  s_mov_b32 s24, 0x80808080
{L}:
  buffer_load_dword v4, v5, {DBGR}, 0 offen sc1
  s_waitcnt vmcnt(0)
  v_and_b32 v6, s24, v4
  v_cmp_ne_u32 vcc, s24, v6
  s_cbranch_vccz {Ld}
  s_sub_u32 s{sSPIN}, s{sSPIN}, 1
  s_cmp_lg_u32 s{sSPIN}, 0
  s_cbranch_scc1 {L}
{Ld}:
  v_readlane_b32 s24, v4, 0
  v_readlane_b32 s25, v4, 1
  v_and_b32 v6, 1, v1
  v_cmp_eq_u32 vcc, 0, v6
  v_mov_b32 v7, s25
  v_mov_b32 v6, s24
  v_cndmask_b32 v6, v7, v6, vcc
  v_cmp_ne_u32 vcc, v6, v4
  s_cmp_eq_u64 vcc, 0
  s_cselect_b32 s24, {0 if self.o.get('slow') else 1}, 0
  v_mov_b32 v4, s24
  v_mov_b32 v5, {ldsaddr}
  ds_write_b32 v5, v4
{Ls}:''')
    def handshake_read(self, ldsaddr):
        self.e(f'''
  v_mov_b32 v5, {ldsaddr}
  ds_read_b32 v4, v5
  s_waitcnt lgkmcnt(0)
  v_readfirstlane_b32 s{sFAST}, v4''')
    def res_load(self):
        L4 = self.L('L_res')
        self.srd(BR, P_X, S*D*2)
        self.e(f'''
  s_mul_i32 s24, s{sSBLK}, {64*896}
  s_lshl_b32 s25, s{sDBLK}, 7
  s_add_u32 s24, s24, s25
  s_lshl_b32 s25, s{sW}, 4
  s_add_u32 s24, s24, s25
  s_cmp_ge_u32 s{sM}, 28
  s_cselect_b32 s24, 0, s24
  v_mul_u32_u24 v5, 896, v1
  buffer_load_dwordx4 v[32:35], v5, {BR}, s24 offen''')
    def res_store(self):
        self.e(f'''
  v_mul_u32_u24 v6, 272, v1
  s_lshl_b32 s25, s{sW}, 5
  s_add_u32 s25, s25, {RES}
  v_add_u32 v6, s25, v6
  v_lshlrev_b32 v12, 16, v32
  v_and_b32 v13, 0xffff0000, v32
  v_lshlrev_b32 v14, 16, v33
  v_and_b32 v15, 0xffff0000, v33
  v_lshlrev_b32 v16, 16, v34
  v_and_b32 v17, 0xffff0000, v34
  v_lshlrev_b32 v18, 16, v35
  v_and_b32 v19, 0xffff0000, v35
  ds_write_b128 v6, v[12:15]
  ds_write_b128 v6, v[16:19] offset:16''')

    Wq = staticmethod(lambda ks, tt: 88 + (ks*3 + tt)*4)
    def qkv_w0_issue(self):
        e = self.e
        self.srd(AR, P_WQKV, D*3*D*2)
        for p in range(3):
            e(f'''
  v_add_u32 v3, {p*64}, v1
  v_mul_u32_u24 v4, 171, v3
  v_lshrrev_b32 v4, 11, v4
  v_mul_u32_u24 v5, 12, v4
  v_sub_u32 v5, v3, v5
  v_lshrrev_b32 v6, 2, v5
  v_and_b32 v5, 3, v5
  v_bfe_u32 v7, v4, 3, 1
  v_lshlrev_b32 v7, 1, v7
  v_xor_b32 v5, v5, v7
  v_mul_u32_u24 v4, 2688, v4
  v_mul_u32_u24 v6, 896, v6
  v_lshlrev_b32 v5, 4, v5
  v_add3_u32 v{8+p}, v4, v5, v6''')
        Lskip = self.L('L_qw')
        e(f'''
  s_mul_i32 s24, s61, 56
  s_mul_i32 s25, s{sW}, {16*2688}
  s_add_u32 s24, s24, s25
  s_mul_i32 s26, s{sW}, 3072''')
        for gi in range(4):
            if gi == 3: e(f'  s_cmp_ge_u32 s{sW}, 4\n  s_cbranch_scc1 {Lskip}')
            for p in range(3):
                e(f'''
  s_add_u32 m0, s26, {gi*8*3072 + p*1024}
  s_add_u32 s27, s24, {gi*8*16*2688}
  buffer_load_dwordx4 v{8+p}, {AR}, s27 offen lds''')
        e(f'{Lskip}:')
    def qkv_w0_finish_a(self, barrier=True):
        e = self.e; Wf = self.Wq
        e(f'''
  v_lshrrev_b32 v3, 4, v1
  v_bfe_u32 v4, v1, 2, 2
  v_lshl_add_u32 v4, v3, 3, v4
  v_mul_u32_u24 v4, 192, v4
  v_and_b32 v5, 1, v1
  v_lshl_add_u32 v4, v5, 3, v4
  v_bfe_u32 v5, v1, 1, 1
  v_and_b32 v6, 1, v3
  v_lshlrev_b32 v6, 1, v6
  v_xor_b32 v5, v5, v6
  v_xor_b32 v6, 2, v5
  v_lshl_add_u32 v24, v5, 4, v4
  v_lshl_add_u32 v25, v6, 4, v4
  s_and_b32 s24, s{sW}, 1
  s_cmp_eq_u32 s24, 0
  s_cselect_b64 vcc, -1, 0
  s_lshl_b32 s25, s24, 6
  v_cndmask_b32 v26, v25, v24, vcc
  v_add_u32 v26, 128, v26
  v_add_u32 v24, s25, v24
  v_add_u32 v25, s25, v25''')
        for ks in range(14):
            if ks == 8: e('  v_add_u32 v24, 49152, v24\n  v_add_u32 v25, 49152, v25\n  v_add_u32 v26, 49152, v26')
            o = (ks % 8)*6144
            for tt in range(3):
                r = Wf(ks, tt)
                e(f'  ds_read_b64_tr_b16 v[{r}:{r+1}], v{24+tt} offset:{o}\n  ds_read_b64_tr_b16 v[{r+2}:{r+3}], v{24+tt} offset:{o+768}')
            if ks % 2 == 1: e('  s_waitcnt lgkmcnt(6)')
        if barrier: e('  s_waitcnt lgkmcnt(0)\n  s_barrier')
    def qkv_w0_finish_b(self):
        e = self.e; Wf = self.Wq
        e('''
  v_and_b32 v3, 15, v1
  v_cmp_eq_u32 vcc, 12, v3
  v_mov_b32 v4, 0x3f803f80''')
        for ks in range(14):
            r = Wf(ks, 1)
            for k in range(4): e(f'  v_cndmask_b32 v{r+k}, v{r+k}, v4, vcc')
    def qkv_colsum_a(self):
        pass
    def qkv_colsum_b(self):
        e = self.e; Wf = self.Wq
        e('''
  s_nop 4
  v_mov_b32 v84, 0x3f803f80
  v_mov_b32 v85, 0x3f803f80
  v_mov_b32 v86, 0x3f803f80
  v_mov_b32 v87, 0x3f803f80''')
        for ks in range(14):
            for tt in range(3):
                r = Wf(ks, tt); c = 52 + tt*4
                C = '0' if ks == 0 else f'v[{c}:{c+3}]'
                if tt < 2: e(f'  v_mfma_f32_16x16x32_bf16 v[{c}:{c+3}], v[{r}:{r+3}], v[84:87], {C}')
                else: e(f'  v_mfma_f32_16x16x32_bf16 v[{c}:{c+3}], v[84:87], v[{r}:{r+3}], {C}')
    def qkv_w0_save(self):
        e = self.e
        L = self.L('L_qs')
        e(f'''
  s_cmp_ge_u32 s{sW}, 2
  s_cbranch_scc1 {L}
  s_lshl_b32 s24, s61, 1
  s_add_u32 s24, s24, s{sW}
  s_mul_i32 s24, s24, {45*1024}
  s_add_u32 s24, s24, {WQT}''')
        regs = [88 + 4*n for n in range(42)] + [52, 56, 60]
        for n, r in enumerate(regs):
            e(f'  buffer_store_dwordx4 v[{r}:{r+3}], v2, {WSR}, s24 offen offset:{(n % 4)*1024} sc1')
            if n % 4 == 3: e('  s_add_u32 s24, s24, 4096')
        e(f'{L}:')
    def qkv_w1_issue(self):
        e = self.e
        L = self.L('L_qw1')
        e(f'''
  s_and_b32 s24, s{sM}, 15
  s_mul_i32 s24, s24, {90*1024}
  s_add_u32 s24, s24, {WQT}
  s_and_b32 s25, s{sW}, 1
  s_mul_i32 s27, s25, {45*1024}
  s_add_u32 s24, s24, s27
  s_mul_i32 s26, s25, {42*1024}
  s_add_u32 s28, s24, {42*1024}
  buffer_load_dwordx4 v[52:55], v2, {WSR}, s28 offen sc1
  buffer_load_dwordx4 v[56:59], v2, {WSR}, s28 offen offset:1024 sc1
  buffer_load_dwordx4 v[60:63], v2, {WSR}, s28 offen offset:2048 sc1
  s_lshr_b32 s25, s{sW}, 1             ; i = 0..3 : frags n = i, i+4, ...
  s_lshl_b32 s25, s25, 10
  s_add_u32 s24, s24, s25
  s_add_u32 s26, s26, s25''')
        for n in range(11):
            if n == 10: e(f'  s_cmp_ge_u32 s{sW}, 4\n  s_cbranch_scc1 {L}')
            e(f'''
  s_add_u32 m0, s26, {n*4096}
  s_add_u32 s27, s24, {n*4096}
  buffer_load_dwordx4 v2, {WSR}, s27 offen sc1 lds''')
        e(f'{L}:')
    def qkv_w1_finish(self):
        e = self.e
        e(f'''
  s_and_b32 s24, s{sW}, 1
  s_mul_i32 s24, s24, {42*1024}
  v_add_u32 v24, s24, v2''')
        regs = [88 + 4*n for n in range(42)]
        for n, r in enumerate(regs):
            e(f'  ds_read_b128 v[{r}:{r+3}], v24 offset:{n*1024}')
            if n % 8 == 7: e('  s_waitcnt lgkmcnt(6)')
        e('  s_waitcnt lgkmcnt(0)\n  s_barrier')
    def pi_of(self, dst, src_hi, tmp):
        self.e(f'  v_lshlrev_b32 v{tmp}, 1, v{src_hi}\n  v_mov_b32 v{dst}, 0x78\n  v_lshrrev_b32 v{dst}, v{tmp}, v{dst}\n  v_and_b32 v{dst}, 3, v{dst}')
    def qkv_x_setup(self, layer):
        e = self.e
        if layer == 0:
            self.srd(AR, P_X, S*D*2)
            e('  v_lshrrev_b32 v3, 2, v1\n  v_lshrrev_b32 v4, 2, v3')
            self.pi_of(5, 4, 6)
            e('''
  v_and_b32 v6, 3, v1
  v_xor_b32 v5, v5, v6
  v_mul_u32_u24 v3, 896, v3
  v_lshl_add_u32 v27, v5, 4, v3
  s_mov_b32 s38, 64''')
        else:
            self.srd(AR, P_WS, S*D*2, off=ACT0 + X2)
            e('  v_mov_b32 v27, v2\n  s_mov_b32 s38, 1024')
        e(f'''
  s_lshl_b32 s24, s{sX}, 4
  s_lshr_b32 s25, s{sM}, 4
  s_lshl_b32 s25, s25, 3
  s_add_u32 s24, s24, s25
  s_add_u32 s24, s24, s{sW}
  s_mul_i32 s39, s24, 14336''')
    def qkv_x_dma(self, part, layer):
        e = self.e
        base = XA if part == 0 else XB
        fl = 'sc1 ' if layer else ''
        e(f'  s_mul_i32 s26, s{sW}, 7168\n  s_mul_i32 s27, s38, {7*part}\n  s_add_u32 s27, s27, s39')
        for k in range(7):
            e(f'''
  s_add_u32 m0, s26, {base + k*1024}
  s_nop 0
  buffer_load_dwordx4 v27, {AR}, s27 offen {fl}lds
  s_add_u32 s27, s27, s38''')
    def qkv_main(self):
        e = self.e; Wf = self.Wq
        acc = lambda rt, tt: 64 + (rt*3 + tt)*4
        xf = lambda b, rt: 36 + (b*2 + rt)*4
        GR = 32
        e('  v_and_b32 v3, 15, v1\n  v_lshrrev_b32 v4, 2, v3')
        self.pi_of(5, 4, 6)
        e(f'''
  v_lshrrev_b32 v6, 4, v1
  v_xor_b32 v5, v5, v6
  v_lshl_add_u32 v5, v3, 2, v5
  v_lshlrev_b32 v5, 4, v5
  s_lshr_b32 s24, s{sW}, 1
  s_mul_i32 s24, s24, 14336
  v_add_u32 v29, s24, v5
  v_add_u32 v28, {XA}, v29
  s_and_b32 s31, s{sW}, 1
  s_mul_i32 s25, s31, 7168
  v_add_u32 v30, s25, v28
  v_add_u32 v31, s25, v29''')
        def rd(ks):
            b = ks & 1
            for rt in range(2):
                r = xf(b, rt)
                if ks < 7: e(f'  ds_read_b128 v[{r}:{r+3}], v28 offset:{rt*7168 + ks*1024}')
                else: e(f'  ds_read_b128 v[{r}:{r+3}], v29 offset:{XB + rt*7168 + (ks-7)*1024}')
            g = 16 + 4*b
            if ks < 7: e(f'  ds_read_b128 v[{g}:{g+3}], v30 offset:{ks*1024}')
            else: e(f'  ds_read_b128 v[{g}:{g+3}], v31 offset:{XB + (ks-7)*1024}')
        stages = {0: 11, 3: 7, 7: 3, 11: 0}
        for ks in range(14):
            if ks in stages:
                La = self.L('L_sw'); Lb = self.L('L_sw')
                e(f'  s_waitcnt vmcnt({stages[ks]})\n  s_barrier')
                if ks == 0: self.stamp(4)
                rd(ks)
            if ks + 1 < 14 and (ks + 1) not in stages:
                rd(ks + 1); e('  s_waitcnt lgkmcnt(3)')
            else:
                e('  s_waitcnt lgkmcnt(0)')
            b = ks & 1
            for rt in range(2):
                x = xf(b, rt)
                for tt in range(3):
                    w = Wf(ks, tt); c = acc(rt, tt)
                    C = '0' if ks == 0 else f'v[{c}:{c+3}]'
                    if tt < 2: e(f'  v_mfma_f32_16x16x32_bf16 v[{c}:{c+3}], v[{w}:{w+3}], v[{x}:{x+3}], {C}')
                    else: e(f'  v_mfma_f32_16x16x32_bf16 v[{c}:{c+3}], v[{x}:{x+3}], v[{w}:{w+3}], {C}')
            g = 16 + 4*b
            C = '0' if ks == 0 else f'v[{GR}:{GR+3}]'
            e(f'  v_mfma_f32_16x16x32_bf16 v[{GR}:{GR+3}], v[{g}:{g+3}], v[{g}:{g+3}], {C}')
        self.stamp(5)
        e(f'''
  v_and_b32 v3, 15, v1
  v_and_b32 v4, 3, v3
  v_lshrrev_b32 v5, 2, v3
  v_lshrrev_b32 v6, 4, v1
  v_cmp_eq_u32 s[28:29], 1, v4
  v_cmp_eq_u32 s[32:33], 2, v4
  v_cmp_eq_u32 s[34:35], 3, v4
  v_cmp_eq_u32 s[36:37], v5, v6
  v_cndmask_b32 v7, v{GR}, v{GR+1}, s[28:29]
  v_cndmask_b32 v7, v7, v{GR+2}, s[32:33]
  v_cndmask_b32 v7, v7, v{GR+3}, s[34:35]
  v_cndmask_b32 v7, 0, v7, s[36:37]
  s_cmp_eq_u32 s31, 0
  s_cselect_b64 vcc, -1, 0
  v_cndmask_b32 v8, v{acc(1,1)}, v{acc(0,1)}, vcc
  v_cmp_le_u32 s[28:29], 48, v1
  v_cndmask_b32 v8, 0, v8, s[28:29]
  v_mov_b32 v9, v7
  v_mov_b32 v10, v8
  v_permlane32_swap_b32 v9, v7
  v_permlane32_swap_b32 v10, v8
  v_add_f32 v7, v9, v7
  v_add_f32 v8, v10, v8
  v_mov_b32 v9, v7
  v_mov_b32 v10, v8
  v_permlane16_swap_b32 v9, v7
  v_permlane16_swap_b32 v10, v8
  v_add_f32 v7, v9, v7
  v_add_f32 v8, v10, v8
  s_mov_b32 s24, {f32bits(1.0/448)}
  s_mov_b32 s25, {f32bits(1e-5)}
  v_mul_f32 v8, s24, v8
  v_mul_f32 v7, s24, v7
  v_fma_f32 v7, -v8, v8, v7
  v_max_f32 v7, 0, v7
  v_add_f32 v7, s25, v7
  v_rsq_f32 v9, v7
  s_lshr_b32 s26, s{sW}, 1
  s_lshl_b32 s26, s26, 8
  s_add_u32 s26, s26, {VSC}
  s_lshl_b32 s27, s31, 7
  s_add_u32 s27, s27, s26
  v_lshlrev_b32 v3, 3, v3
  v_add_u32 v4, s27, v3
  v_add_u32 v3, s26, v3
  ds_write_b64 v4, v[8:9]
  v_lshrrev_b32 v4, 4, v1
  v_lshlrev_b32 v4, 5, v4
  v_add_u32 v4, s26, v4
  s_waitcnt lgkmcnt(0)
  s_barrier
  ds_read_b64 v[32:33], v3
  ds_read_b64 v[34:35], v3 offset:128
  ds_read_b128 v[36:39], v4
  ds_read_b128 v[40:43], v4 offset:16
  ds_read_b128 v[44:47], v4 offset:128
  ds_read_b128 v[48:51], v4 offset:144''')
        qs = (DH ** -0.5) * LOG2E
        e(f'''
  s_cmp_eq_u32 s31, 0
  s_cselect_b32 s25, {f32bits(qs)}, 1.0
  s_cselect_b32 s27, 0x3f80, 0
  v_mov_b32 v7, s27
  v_cmp_le_u32 s[28:29], 48, v1
  s_waitcnt lgkmcnt(4)
  v_mul_f32 v5, s25, v33
  v_mul_f32 v6, s25, v35''')
        for rt in range(2):
            mu = 32 + 2*rt; rr = 5 + rt
            for tt in range(2):
                c = acc(rt, tt); cs = 52 + tt*4
                for r in range(4):
                    e(f'  v_fma_f32 v{c+r}, -v{mu}, v{cs+r}, v{c+r}\n  v_mul_f32 v{c+r}, v{rr}, v{c+r}')
            o = 8 + rt*4
            a0, a1 = acc(rt, 0), acc(rt, 1)
            e(f'''
  v_cvt_pk_bf16_f32 v{o}, v{a0}, v{a0+1}
  v_cvt_pk_bf16_f32 v{o+1}, v{a0+2}, v{a0+3}
  v_cvt_pk_bf16_f32 v{o+2}, v{a1}, v{a1+1}
  v_cvt_pk_bf16_f32 v{o+3}, v{a1+2}, v{a1+3}
  v_cndmask_b32 v{o+2}, v{o+2}, v7, s[28:29]
  v_cndmask_b32 v{o+3}, v{o+3}, 0, s[28:29]''')
        La = self.L('L_qk'); Lb = self.L('L_qk')
        e(f'''
  s_and_b32 s24, s{sM}, 15
  s_lshl_b32 s25, s24, 7
  s_lshl_b32 s26, s{sX}, 4
  s_add_u32 s25, s25, s26
  s_lshr_b32 s26, s{sM}, 4
  s_lshl_b32 s26, s26, 3
  s_add_u32 s25, s25, s26
  s_lshr_b32 s26, s{sW}, 1
  s_lshl_b32 s26, s26, 1
  s_add_u32 s25, s25, s26
  s_lshl_b32 s30, s25, 10
  s_add_u32 s30, s30, s{sLOFF}
  s_cmp_eq_u32 s31, 0
  s_cbranch_scc0 {La}
  s_lshl_b32 s26, s26, 10
  s_add_u32 s26, s26, {QL}
  v_add_u32 v3, s26, v2
  ds_write_b128 v3, v[8:11]
  ds_write_b128 v3, v[12:15] offset:1024''')
        if self.o.get('dbgq'):
            e(f'  buffer_store_dwordx4 v[8:11], v2, {WSR}, s30 offen sc1\n  buffer_store_dwordx4 v[12:15], v2, {WSR}, s30 offen offset:1024 sc1')
        e(f'''
  s_branch {Lb}
{La}:
  s_add_u32 s27, s30, {KF}
  buffer_store_dwordx4 v[8:11], v2, {WSR}, s27 offen sc1
  buffer_store_dwordx4 v[12:15], v2, {WSR}, s27 offen offset:1024 sc1
{Lb}:
  s_lshl_b32 s26, s31, 10
  s_add_u32 s27, s30, s26
  s_add_u32 s27, s27, {VF}
  v_and_b32 v3, 15, v1
  v_cmp_le_u32 s[28:29], 12, v3
  s_cmp_eq_u32 s31, 1
  s_cselect_b64 s[28:29], s[28:29], 0
  v_cmp_eq_u32 vcc, 12, v3
  v_mov_b32 v7, 0x3f803f80
  s_nop 0
  v_cndmask_b32 v7, 0, v7, vcc
  s_waitcnt lgkmcnt(0)''')
        for rt in range(2):
            c = acc(rt, 2)
            for r in range(4):
                mu = 36 + rt*8 + 2*r
                e(f'  v_fma_f32 v{c+r}, -v{mu}, v60, v{c+r}\n  v_mul_f32 v{c+r}, v{mu+1}, v{c+r}')
            o = 16 + rt*2
            e(f'''
  v_cvt_pk_bf16_f32 v{o}, v{c}, v{c+1}
  v_cvt_pk_bf16_f32 v{o+1}, v{c+2}, v{c+3}
  v_cndmask_b32 v{o}, v{o}, v7, s[28:29]
  v_cndmask_b32 v{o+1}, v{o+1}, v7, s[28:29]''')
        e(f'  buffer_store_dwordx4 v[16:19], v2, {WSR}, s27 offen sc1')

    def tlb_warm(self):
        e = self.e
        L = self.L('L_tw'); L2 = self.L('L_tw')
        e(f'  s_cmp_lg_u32 s{sW}, 6\n  s_cbranch_scc1 {L}')
        e(f'  v_lshlrev_b32 v3, 21, v1\n  s_mov_b64 exec, 0xffffffff\n  buffer_load_dword v11, v3, {WSR}, 0 offen\n  s_mov_b64 exec, 0xf')
        self.srd(BR, P_W1, S*F*2)
        e(f'  buffer_load_dword v12, v3, {BR}, 0 offen')
        self.srd(BR, P_W2, S*F*2)
        e(f'  s_nop 4\n  buffer_load_dword v13, v3, {BR}, 0 offen\n  s_mov_b64 exec, 1')
        self.srd(BR, P_WO, D*D*2)
        e(f'  buffer_load_dword v14, v3, {BR}, 0 offen')
        self.srd(BR, P_OUT, S*D*2)
        e(f'  buffer_load_dword v15, v3, {BR}, 0 offen\n  s_mov_b64 exec, -1')
        e(f'  s_waitcnt vmcnt(5)\n  s_branch {L2}\n{L}:\n  s_waitcnt vmcnt(0)\n{L2}:')
    def two_addr(self):
        e = self.e
        self.srd(BR, P_WO, D*D*2)
        e(f'''
  s_lshr_b32 s43, s{sWG}, 4
  s_and_b32 s40, s{sWG}, 15
  v_lshrrev_b32 v3, 3, v1
  v_and_b32 v4, 7, v1
  v_bfe_u32 v5, v3, 1, 2
  v_lshlrev_b32 v5, 1, v5
  v_xor_b32 v4, v4, v5
  v_mul_u32_u24 v5, 896, v3
  v_lshl_add_u32 v9, v4, 4, v5
  v_mov_b32 v6, 0x7ff00000
  v_cmp_le_u32 vcc, 4, v3
  s_nop 1
  v_cndmask_b32 v10, v9, v6, vcc
  s_mul_i32 s40, s40, {28*896}
  s_lshl_b32 s43, s43, 7
  s_add_u32 s40, s40, s43
  s_lshl_b32 s59, s{sWG}, 12
  s_add_u32 s59, s59, {WOT}''')
    def two_load(self):
        e = self.e
        L = self.L('L_two')
        e(f'  s_cmp_lg_u32 s{sW}, 7\n  s_cbranch_scc1 {L}\n  s_cmp_ge_u32 s{sWG}, 112\n  s_cbranch_scc1 {L}')
        self.two_addr()
        for n4 in range(4):
            r = 68 + 4*n4
            e(f'  s_add_u32 s27, s40, {n4*8*896}\n  buffer_load_dwordx4 v[{r}:{r+3}], v{10 if n4 == 3 else 9}, {BR}, s27 offen')
        e(f'{L}:')
    def two_process(self):
        e = self.e
        L = self.L('L_two')
        TB = 143360
        e(f'''
  s_cmp_lg_u32 s{sW}, 7
  s_cbranch_scc1 {L}
  s_cmp_ge_u32 s{sWG}, 112
  s_cbranch_scc1 {L}
  v_add_u32 v28, {TB}, v2
  v_lshrrev_b32 v3, 4, v1
  v_bfe_u32 v4, v1, 2, 2
  v_lshl_add_u32 v5, v3, 2, v4
  v_bfe_u32 v6, v5, 1, 2
  v_lshlrev_b32 v5, 7, v5
  v_and_b32 v7, 1, v1
  v_lshl_add_u32 v5, v7, 3, v5
  v_bfe_u32 v7, v1, 1, 1
  v_lshl_add_u32 v5, v7, 4, v5
  v_add_u32 v5, {TB}, v5''')
        wb = [29, 30, 31, 26]
        for nt in range(4):
            e(f'  v_xor_b32 v7, {nt}, v6\n  v_lshl_add_u32 v{wb[nt]}, v7, 5, v5')
        for hf in range(2):
            q0 = 68 + 8*hf
            e(f'  ds_write_b128 v28, v[{q0}:{q0+3}]\n  ds_write_b128 v28, v[{q0+4}:{q0+7}] offset:1024\n  s_waitcnt lgkmcnt(0)')
            for nt in range(4):
                r = 8 + 4*nt + 2*hf
                e(f'  ds_read_b64_tr_b16 v[{r}:{r+1}], v{wb[nt]}')
            e('  s_waitcnt lgkmcnt(0)')
        for nt in range(4):
            e(f'  buffer_store_dwordx4 v[{8+4*nt}:{11+4*nt}], v2, {WSR}, s59 offen offset:{nt*1024} sc1')
        e(f'{L}:')

    def t12_issue(self, touch=False, base=65536):
        e = self.e
        self.srd(AR, P_W1, S*F*2)
        self.srd(BR, P_W2, F*S*2)
        e(f'''
  v_lshrrev_b32 v3, 3, v1
  v_and_b32 v4, 7, v1
  v_bfe_u32 v5, v3, 1, 1
  v_lshlrev_b32 v5, 2, v5
  v_xor_b32 v4, v4, v5
  v_mul_u32_u24 v5, {F*2}, v3
  v_lshl_add_u32 v8, v4, 4, v5
  v_mul_u32_u24 v5, {S*2}, v3
  v_lshl_add_u32 v9, v4, 4, v5
  s_lshl_b32 s30, s{sM}, 2
  s_lshr_b32 s31, s{sW}, 1
  s_add_u32 s30, s30, s31               ; ks = (m*8+w)>>1
  s_and_b32 s31, s{sW}, 1
  s_lshl_b32 s31, s31, 1
  s_lshl_b32 s32, s{sX}, 2
  s_add_u32 s31, s31, s32
  s_mul_i32 s33, s30, {16*F*2}
  s_mul_i32 s34, s31, 112
  s_add_u32 s33, s33, s34               ; w1 src
  s_min_u32 s35, s30, 111
  s_mul_i32 s35, s35, {16*S*2}
  s_lshl_b32 s34, s31, 7
  s_add_u32 s35, s35, s34               ; w2 src
  s_lshl_b32 s26, s{sW}, 13
  s_add_u32 s26, s26, {base}''')
        for b in range(2):
            for n in range(2):
                e(f'''
  {'s_mov_b32 m0, 145408' if touch else f's_add_u32 m0, s26, {b*2048 + n*1024}'}
  s_add_u32 s27, s33, {b*112 + n*8*F*2}
  buffer_load_dwordx4 v8, {AR}, s27 offen lds''')
        for b in range(2):
            for n in range(2):
                e(f'''
  {'s_mov_b32 m0, 145408' if touch else f's_add_u32 m0, s26, {4096 + b*2048 + n*1024}'}
  s_add_u32 s27, s35, {b*128 + n*8*S*2}
  buffer_load_dwordx4 v9, {BR}, s27 offen lds''')
    def t12_tr(self, regs0, base=65536):
        e = self.e
        e(f'''
  s_lshl_b32 s26, s{sW}, 13
  s_add_u32 s26, s26, {base}
  v_lshrrev_b32 v23, 4, v1
  v_bfe_u32 v24, v1, 2, 2
  v_lshrrev_b32 v25, 1, v23
  v_lshl_add_u32 v25, v25, 3, v24
  v_lshlrev_b32 v25, 7, v25
  v_and_b32 v26, 1, v1
  v_lshl_add_u32 v25, v26, 3, v25
  v_bfe_u32 v26, v1, 1, 1
  v_and_b32 v27, 1, v23
  v_lshl_add_u32 v26, v27, 1, v26
  v_lshl_add_u32 v25, v26, 4, v25
  v_add_u32 v25, s26, v25
  v_lshrrev_b32 v26, 1, v24
  v_lshl_add_u32 v23, v26, 6, v25
  v_xor_b32 v26, 1, v26
  v_lshl_add_u32 v24, v26, 6, v25''')
        for blk in range(4):
            for tl in range(2):
                r = regs0 + (blk*2 + tl)*4
                e(f'  ds_read_b64_tr_b16 v[{r}:{r+1}], v{23+tl} offset:{blk*2048}\n  ds_read_b64_tr_b16 v[{r+2}:{r+3}], v{23+tl} offset:{blk*2048+512}')
    def t12_store(self, regs0, sc='sc1'):
        e = self.e
        L = self.L('L_t12')
        e(f'''
  s_lshl_b32 s30, s{sM}, 2
  s_lshr_b32 s31, s{sW}, 1
  s_add_u32 s30, s30, s31
  s_and_b32 s31, s{sW}, 1
  s_lshl_b32 s31, s31, 1
  s_lshl_b32 s32, s{sX}, 2
  s_add_u32 s31, s31, s32
  s_lshl_b32 s33, s31, 7
  s_add_u32 s33, s33, s30
  s_lshl_b32 s33, s33, 11
  s_add_u32 s33, s33, {W1T}
  s_add_u32 s34, s33, {128*2048}
  s_mul_i32 s35, s31, 112
  s_add_u32 s35, s35, s30
  s_lshl_b32 s35, s35, 11
  s_add_u32 s35, s35, {W2T}
  s_add_u32 s36, s35, {112*2048}
  s_waitcnt lgkmcnt(0)''')
        for b in range(2):
            for tl in range(2):
                r = regs0 + (b*2 + tl)*4
                e(f'  buffer_store_dwordx4 v[{r}:{r+3}], v2, {WSR}, s{33+b} offen offset:{tl*1024} {sc}')
        e(f'  s_cmp_ge_u32 s30, 112\n  s_cbranch_scc1 {L}')
        for b in range(2):
            for tl in range(2):
                r = regs0 + 16 + (b*2 + tl)*4
                e(f'  buffer_store_dwordx4 v[{r}:{r+3}], v2, {WSR}, s{35+b} offen offset:{tl*1024} {sc}')
        e(f'{L}:')

    def t12_process(self, regs0, base=65536, sc='sc1'):
        self.t12_tr(regs0, base)
        self.t12_store(regs0, sc)

    def w_loads(self, n):
        out = []
        for k in range(n):
            r = 128 + 4*k
            s = f'  buffer_load_dwordx4 v[{r}:{r+3}], v2, {WSR}, s56 offen offset:{(k % 4)*1024} sc1'
            if k % 4 == 3: s += '\n  s_add_u32 s56, s56, 4096'
            out.append(s)
        return out
    def w1_base(self):
        self.e(f'''
  s_lshl_b32 s56, s{sSBLK}, 18
  s_lshl_b32 s57, s{sW}, 15
  s_add_u32 s56, s56, s57
  s_add_u32 s56, s56, {W1T}''')
    def w2_base(self):
        self.e(f'''
  s_mul_i32 s56, s{sSBLK}, {112*2048}
  s_mul_i32 s57, s{sW}, {28*1024}
  s_add_u32 s56, s56, s57
  s_add_u32 s56, s56, {W2T}''')

    def att(self, mid=None, bg=None, hook=None):
        e = self.e
        Sx = lambda n: 32 + 4*n
        NS = 6
        FR = lambda n: 104 + 4*(n % NS)
        e(f'''
  v_and_b32 v16, 15, v1
  v_lshrrev_b32 v17, 4, v1
  v_lshlrev_b32 v17, 2, v17
  v_mov_b32 v18, 0xf149f2ca
  s_and_b32 s35, s{sW}, 1
  s_cmp_eq_u32 s35, 0
  s_cselect_b64 s[36:37], -1, 0''')
        for r in range(4):
            e(f'''
  v_add_u32 v19, {r}, v17
  v_cmp_gt_u32 vcc, v19, v16
  s_nop 1
  v_cndmask_b32 v20, v18, 0, vcc
  v_cndmask_b32 v21, 0, v18, vcc
  v_cndmask_b32 v{Sx(0)+r}, v18, v20, s[36:37]
  v_cndmask_b32 v{Sx(1)+r}, v20, 0, s[36:37]
  v_cndmask_b32 v{Sx(16)+r}, 0, v21, s[36:37]
  v_cndmask_b32 v{Sx(17)+r}, v21, v18, s[36:37]''')
        e(f'''
  s_lshl_b32 s24, s{sX}, 1
  s_lshr_b32 s25, s{sM}, 4
  s_add_u32 s28, s24, s25
  s_and_b32 s29, s{sM}, 15
  s_add_u32 s30, s{sPH}, 1
  s_lshl_b32 s33, s{sW}, 10
  s_add_u32 s33, s33, {QL}
  v_add_u32 v19, s33, v2
  ds_read_b128 v[4:7], v19''')
        self.wgpoll(f'''
  v_min_u32 v3, 2, v1
  v_sub_u32 v3, s28, v3
  v_max_i32 v3, 0, v3
  v_and_b32 v22, 1, v3
  v_lshlrev_b32 v22, 4, v22
  v_add_u32 v22, s29, v22
  v_lshlrev_b32 v22, 3, v22
  v_lshrrev_b32 v3, 1, v3
  v_add_u32 v3, v3, v22
  v_lshlrev_b32 v3, 7, v3
  v_mov_b32 v23, v4''', 30) if False else None
        L = self.L('L_wp')
        e(f'''
  s_cmp_lg_u32 s{sW}, 0
  s_cbranch_scc1 {L}
  v_min_u32 v3, 2, v1
  v_sub_u32 v3, s28, v3
  v_max_i32 v3, 0, v3
  v_and_b32 v22, 1, v3
  v_lshlrev_b32 v22, 4, v22
  v_add_u32 v22, s29, v22
  v_lshlrev_b32 v22, 3, v22
  v_lshrrev_b32 v3, 1, v3
  v_add_u32 v3, v3, v22
  v_lshlrev_b32 v3, 7, v3''')
        self.poll(3, 30, vtmp=22)
        e(f'{L}:\n  s_barrier')
        self.stamp(9)
        e(f'''
  s_lshl_b32 s26, s28, 3
  s_sub_u32 s26, s26, 16
  s_mul_i32 s27, s{sW}, 3
  s_add_u32 s28, s26, s27
  s_lshl_b32 s31, s29, 7
  s_mul_i32 s32, s{sW}, 3072''')
        for n in range(3):
            e(f'''
  s_add_u32 s33, s28, {n}
  s_add_u32 s34, s33, s31
  s_lshl_b32 s34, s34, 10
  s_add_u32 s34, s34, s{sLOFF}
  s_cmp_lt_i32 s33, 0
  s_cselect_b32 s34, 0x7ff00000, s34
  s_add_u32 s38, s34, {KF}
  s_add_u32 m0, s32, {KT + n*1024}
  s_nop 0
  buffer_load_dwordx4 v2, {WSR}, s38 offen sc1 lds
  s_add_u32 s38, s34, {VF}
  s_add_u32 m0, s32, {VT + n*1024}
  s_nop 0
  buffer_load_dwordx4 v2, {WSR}, s38 offen sc1 lds''')
        nmid = mid() if mid else 0
        Lnf = self.L('L_nf')
        if isinstance(nmid, str):
            e(nmid)
        else:
            e(f'  s_waitcnt vmcnt({nmid})')
        e(f'''
  s_cmp_ge_i32 s28, 0
  s_cbranch_scc1 {Lnf}
  v_lshlrev_b32 v19, 4, v16
  v_add_u32 v19, s32, v19
  v_mov_b32 v20, 0xf149
  s_mov_b64 exec, 0xffff''')
        for n in range(3):
            Ln = self.L('L_nf')
            e(f'''
  s_add_u32 s33, s28, {n}
  s_cmp_ge_i32 s33, 0
  s_cbranch_scc1 {Ln}
  ds_write_b32 v19, v20 offset:{KT + n*1024 + 48*16 + 8}
{Ln}:''')
        e(f'''
  s_mov_b64 exec, -1
{Lnf}:
  s_waitcnt lgkmcnt(0)
  s_barrier
  s_lshr_b32 s33, s{sW}, 1
  s_lshl_b32 s33, s33, 11
  v_add_u32 v19, s33, v2''')
        self.stamp(10)
        for n in range(NS):
            e(f'  ds_read_b128 v[{FR(n)}:{FR(n)+3}], v19 offset:{KT + n*1024}')
        order = [('K', n) for n in range(18)] + [('V', n) for n in range(18)]
        nxt = NS
        for n in range(18):
            e(f'  s_waitcnt lgkmcnt({NS-1})')
            C = f'v[{Sx(n)}:{Sx(n)+3}]' if n in (0, 1, 16, 17) else '0'
            e(f'  v_mfma_f32_16x16x32_bf16 v[{Sx(n)}:{Sx(n)+3}], v[{FR(n)}:{FR(n)+3}], v[4:7], {C}')
            kind, idx = order[nxt]
            e(f'  ds_read_b128 v[{FR(nxt)}:{FR(nxt)+3}], v19 offset:{(KT if kind == "K" else VT) + idx*1024}')
            nxt += 1
        self.stamp(11)
        e(f'  v_max3_f32 v20, v32, v33, v34\n  v_max3_f32 v21, v35, v36, v37')
        regs = list(range(38, 32 + 72)); k = 0; t = 0
        while k + 1 < len(regs):
            e(f'  v_max3_f32 v{20+t}, v{20+t}, v{regs[k]}, v{regs[k+1]}'); k += 2; t ^= 1
        e('''
  v_max_f32 v20, v20, v21
  v_mov_b32 v21, v20
  v_permlane32_swap_b32 v21, v20
  v_max_f32 v20, v21, v20
  v_mov_b32 v21, v20
  v_permlane16_swap_b32 v21, v20
  v_max_f32 v20, v21, v20
  v_mov_b32 v21, v20''')
        vn = 0
        bg = list(bg or [])
        for p in range(9):
            b = 32 + 8*p
            if p == 2 and hook: hook()
            for _ in range(2):
                if bg and p >= 3: e(bg.pop(0))
            for r in range(b, b + 8, 2):
                e(f'  v_pk_add_f32 v[{r}:{r+1}], v[{r}:{r+1}], v[20:21] neg_lo:[0,1] neg_hi:[0,1]')
            for r in range(b, b + 8):
                e(f'  v_exp_f32 v{r}, v{r}')
            e(f'''
  v_cvt_pk_bf16_f32 v{b}, v{b}, v{b+1}
  v_cvt_pk_bf16_f32 v{b+1}, v{b+2}, v{b+3}
  v_cvt_pk_bf16_f32 v{b+2}, v{b+4}, v{b+5}
  v_cvt_pk_bf16_f32 v{b+3}, v{b+6}, v{b+7}''')
            for T in range(2):
                c = 8 + 4*T
                C = '0' if p == 0 else f'v[{c}:{c+3}]'
                g = 18 + vn
                remaining = min(NS - 1, 35 - g)
                e(f'  s_waitcnt lgkmcnt({remaining})')
                e(f'  v_mfma_f32_16x16x32_bf16 v[{c}:{c+3}], v[{FR(g)}:{FR(g)+3}], v[{b}:{b+3}], {C}')
                if nxt < 36:
                    kind, idx = order[nxt]
                    e(f'  ds_read_b128 v[{FR(nxt)}:{FR(nxt)+3}], v19 offset:{VT + idx*1024}')
                    nxt += 1
                vn += 1
        e(f'''
  v_mov_b32 v21, v12
  v_mov_b32 v22, v12
  v_permlane32_swap_b32 v21, v22
  v_mov_b32 v21, v22
  v_permlane16_swap_b32 v21, v22
  v_rcp_f32 v22, v22''')
        for r in range(8): e(f'  v_mul_f32 v{8+r}, v{8+r}, v22')
        e(f'''
  v_cvt_pk_bf16_f32 v24, v8, v9
  v_cvt_pk_bf16_f32 v25, v10, v11
  v_cvt_pk_bf16_f32 v26, v12, v13
  v_cvt_pk_bf16_f32 v27, v14, v15
  s_lshl_b32 s24, s{sX}, 1
  s_lshr_b32 s25, s{sM}, 4
  s_add_u32 s24, s24, s25
  s_lshl_b32 s24, s24, 3
  s_add_u32 s24, s24, s{sW}
  s_lshl_b32 s33, s24, 4
  s_add_u32 s33, s33, s29
  s_lshl_b32 s33, s33, 10
  s_add_u32 s33, s33, s{sLOFF}
  s_add_u32 s33, s33, {OF}''')
        self.lstore([f'  buffer_store_dwordx4 v[24:27], v2, {WSR}, s33 offen'])

    def wo_w_dma(self):
        e = self.e
        self.srd(AR, P_WO, D*D*2)
        e(f'''
  v_lshrrev_b32 v23, 3, v1
  v_and_b32 v24, 7, v1
  v_bfe_u32 v25, v23, 1, 2
  v_lshlrev_b32 v25, 1, v25
  v_xor_b32 v24, v24, v25
  v_mul_u32_u24 v25, 896, v23
  v_lshl_add_u32 v26, v24, 4, v25
  v_mov_b32 v24, 0x7ff00000
  v_cmp_le_u32 vcc, 4, v23
  s_mul_i32 s24, s{sW}, {2*28*896}
  s_lshl_b32 s25, s{sDBLK}, 7
  v_cndmask_b32 v27, v26, v24, vcc
  s_add_u32 s24, s24, s25
  s_lshl_b32 s26, s{sW}, 13
  s_add_u32 s26, s26, {WOL}''')
        for hh in range(2):
            for n4 in range(4):
                e(f'''
  s_add_u32 m0, s26, {hh*4096 + n4*1024}
  s_add_u32 s27, s24, {(hh*28 + n4*8)*896}
  buffer_load_dwordx4 v{27 if n4 == 3 else 26}, {AR}, s27 offen lds''')
    def wo_main(self):
        e = self.e
        of = lambda hh: 64 + 4*hh
        acc = lambda nt: 96 + 4*nt
        wf = lambda n: 32 + 4*(n % 8)
        e(f'''
  s_and_b32 s24, s{sW}, 3
  s_lshl_b32 s25, s{sSBLK}, 2
  s_add_u32 s30, s24, s25
  s_lshr_b32 s31, s{sW}, 2
  s_lshl_b32 s28, s31, 3
  s_add_u32 s32, s{sPH}, 2
  v_lshrrev_b32 v3, 4, v1
  v_bfe_u32 v4, v1, 2, 2
  v_lshl_add_u32 v5, v3, 2, v4
  v_bfe_u32 v6, v5, 1, 2
  v_lshlrev_b32 v5, 7, v5
  v_and_b32 v7, 1, v1
  v_lshl_add_u32 v5, v7, 3, v5
  v_bfe_u32 v7, v1, 1, 1
  v_lshl_add_u32 v5, v7, 4, v5
  s_lshl_b32 s24, s31, 15
  s_add_u32 s24, s24, {WOL}
  v_add_u32 v5, s24, v5
  v_xor_b32 v7, 0, v6
  v_lshl_add_u32 v8, v7, 5, v5
  v_xor_b32 v7, 1, v6
  v_lshl_add_u32 v9, v7, 5, v5
  v_xor_b32 v7, 2, v6
  v_lshl_add_u32 v10, v7, 5, v5
  v_xor_b32 v7, 3, v6
  v_lshl_add_u32 v11, v7, 5, v5
  s_lshl_b32 s33, s30, 4
  s_add_u32 s33, s33, s28
  s_lshl_b32 s33, s33, 10
  s_add_u32 s33, s33, s{sLOFF}
  s_add_u32 s33, s33, {OF}''')
        seq = [(hh, nt) for hh in range(8) for nt in range(4)]
        def wrd(n):
            hh, nt = seq[n]; r = wf(n)
            e(f'  ds_read_b64_tr_b16 v[{r}:{r+1}], v{8+nt} offset:{hh*4096}\n  ds_read_b64_tr_b16 v[{r+2}:{r+3}], v{8+nt} offset:{hh*4096+2048}')
        NW = 6
        wf = lambda n: 32 + 4*(n % NW)
        for n in range(NW): wrd(n)
        self.wgpoll(f'''
  s_lshr_b32 s26, s{sSBLK}, 1
  s_and_b32 s27, s26, 1
  s_lshl_b32 s27, s27, 4
  v_and_b32 v3, 15, v1
  v_add_u32 v3, s27, v3
  v_lshlrev_b32 v3, 2, v3
  s_lshl_b32 s26, s{sX}, 7
  s_add_u32 s26, s26, {LF_OFF}
  v_add_u32 v3, s26, v3''', 32)
        self.stamp(14)
        for hh in range(8):
            e(f'  s_add_u32 s34, s33, {hh*1024}\n  buffer_load_dwordx4 v[{of(hh)}:{of(hh)+3}], v2, {WSR}, s34 offen sc1')
        for n, (hh, nt) in enumerate(seq):
            if nt == 0: e(f'  s_waitcnt vmcnt({7 - hh})')
            e(f'  s_waitcnt lgkmcnt({2*min(NW - 1, 31 - n)})')
            c = acc(nt); C = '0' if hh == 0 else f'v[{c}:{c+3}]'
            e(f'  v_mfma_f32_16x16x32_bf16 v[{c}:{c+3}], v[{of(hh)}:{of(hh)+3}], v[{wf(n)}:{wf(n)+3}], {C}')
            if n + NW < 32: wrd(n + NW)
        self.stamp(15)
        La = self.L('L_wo'); Lb = self.L('L_wo')
        e(f'''
  s_lshl_b32 s24, s{sW}, 11
  v_add_u32 v4, s24, v2
  s_xor_b32 s25, s{sW}, 4
  s_lshl_b32 s25, s25, 11
  v_add_u32 v5, s25, v2
  v_lshrrev_b32 v6, 4, v1
  v_lshlrev_b32 v6, 2, v6
  s_and_b32 s24, s{sW}, 3
  s_lshl_b32 s24, s24, 4
  v_add_u32 v6, s24, v6
  v_mul_u32_u24 v6, 272, v6
  v_and_b32 v7, 15, v1
  v_lshl_add_u32 v6, v7, 2, v6
  s_lshl_b32 s24, s31, 7
  s_add_u32 s24, s24, {RES}
  v_add_u32 v6, s24, v6''')
        for t in range(2):
            for r in range(4): e(f'  ds_read_b32 v{112 + t*4 + r}, v6 offset:{r*272 + t*64}')
        e(f'''
  s_cmp_eq_u32 s31, 0
  s_cbranch_scc0 {La}
  ds_write_b128 v4, v[104:107]
  ds_write_b128 v4, v[108:111] offset:1024
  s_branch {Lb}
{La}:
  ds_write_b128 v4, v[96:99]
  ds_write_b128 v4, v[100:103] offset:1024
  s_nop 1
  v_mov_b32 v96, v104
  v_mov_b32 v97, v105
  v_mov_b32 v98, v106
  v_mov_b32 v99, v107
  v_mov_b32 v100, v108
  v_mov_b32 v101, v109
  v_mov_b32 v102, v110
  v_mov_b32 v103, v111
{Lb}:''')
        for k in range(8): e(f'  s_waitcnt lgkmcnt(2)\n  v_add_f32 v{96+k}, v{96+k}, v{112+k}' if k == 0 else f'  v_add_f32 v{96+k}, v{96+k}, v{112+k}')
        e(f'''
  s_waitcnt lgkmcnt(0)
  s_barrier
  ds_read_b128 v[104:107], v5
  ds_read_b128 v[108:111], v5 offset:1024
  s_lshl_b32 s24, s{sDBLK}, 1
  s_add_u32 s24, s24, s31
  s_lshl_b32 s25, s30, 4
  s_add_u32 s26, s25, s24
  s_lshl_b32 s27, s26, 7
  s_add_u32 s27, s27, s{sLOFF}
  s_add_u32 s27, s27, {ST}
  v_lshrrev_b32 v3, 4, v1
  v_lshlrev_b32 v3, 5, v3
  s_lshl_b32 s28, s{sLAY}, 13
  s_add_u32 s28, s28, {XF_OFF}
  s_lshl_b32 s29, s26, 2
  s_add_u32 s29, s29, s28
  s_waitcnt lgkmcnt(0)''')
        for k in range(8): e(f'  v_add_f32 v{96+k}, v{96+k}, v{104+k}')
        for r in range(4):
            e(f'''
  v_add_f32 v{104+2*r}, v{96+r}, v{100+r}
  v_mul_f32 v{105+2*r}, v{96+r}, v{96+r}
  v_fmac_f32 v{105+2*r}, v{100+r}, v{100+r}''')
        for sh in (8, 4, 2, 1):
            for k in range(8): e(f'  v_add_f32 v{104+k}, v{104+k}, v{104+k} row_ror:{sh} row_mask:0xf bank_mask:0xf')
        e(f'''
  v_cmp_eq_u32 vcc, 0, v7
  s_and_saveexec_b64 s[36:37], vcc''')
        self.lstore([f'  buffer_store_dwordx4 v[104:107], v3, {WSR}, s27 offen', f'  buffer_store_dwordx4 v[108:111], v3, {WSR}, s27 offen offset:16'])
        e('  s_mov_b64 exec, s[36:37]')
        for t in range(2):
            for r in range(4): e(f'  ds_write_b32 v6, v{96 + t*4 + r} offset:{r*272 + t*64}')
        e(f'''
  v_mov_b32 v4, 1
  s_lshl_b32 s34, s25, 2
  s_add_u32 s34, s34, s28
  v_min_u32 v5, 13, v1
  v_lshlrev_b32 v5, 2, v5
  v_add_u32 v5, s34, v5
  s_lshl_b32 s27, s25, 7
  s_add_u32 s27, s27, s{sLOFF}
  s_add_u32 s27, s27, {ST}
  v_lshl_add_u32 v8, v7, 7, v3
  v_mov_b32 v9, 0x7ff00000
  v_cmp_le_u32 vcc, 14, v7
  s_nop 1
  v_cndmask_b32 v8, v8, v9, vcc
  s_waitcnt vmcnt(0)
  s_mov_b64 exec, 1''')
        self.local_flag_store(4, 29)
        e('  s_mov_b64 exec, -1')
        self.stamp(16)
        self.poll(5, '1')
        self.stamp(17)
        e(f'''
  buffer_load_dwordx4 v[104:107], v8, {WSR}, s27 offen sc1
  buffer_load_dwordx4 v[108:111], v8, {WSR}, s27 offen offset:16 sc1
  s_mov_b32 s24, {f32bits(1.0/448)}
  s_mov_b32 s25, {f32bits(1e-5)}
  s_waitcnt vmcnt(0)''')
        for sh in (8, 4, 2, 1):
            for k in range(8): e(f'  v_add_f32 v{104+k}, v{104+k}, v{104+k} row_ror:{sh} row_mask:0xf bank_mask:0xf')
        for r in range(4):
            su, sq = 104 + 2*r, 105 + 2*r
            e(f'  v_mul_f32 v{su}, s24, v{su}\n  v_mul_f32 v{sq}, s24, v{sq}')
        for r in range(4):
            su, sq = 104 + 2*r, 105 + 2*r
            e(f'  v_fma_f32 v{sq}, -v{su}, v{su}, v{sq}\n  v_max_f32 v{sq}, 0, v{sq}\n  v_add_f32 v{8+r}, s25, v{sq}')
        for r in range(4): e(f'  v_rsq_f32 v{8+r}, v{8+r}')
        for r in range(4): e(f'  v_mul_f32 v{12+r}, v{8+r}, v{8+r}')
        for r in range(4): e(f'  v_fma_f32 v{12+r}, v{12+r}, v{105+2*r}, s25')
        for r in range(4): e(f'  v_rsq_f32 v{12+r}, v{12+r}')
        for r in range(4): e(f'  v_sub_f32 v{96+r}, v{96+r}, v{104+2*r}\n  v_sub_f32 v{100+r}, v{100+r}, v{104+2*r}')
        for r in range(4): e(f'  v_mul_f32 v{8+r}, v{8+r}, v{12+r}')
        for r in range(4): e(f'  v_mul_f32 v{96+r}, v{96+r}, v{8+r}\n  v_mul_f32 v{100+r}, v{100+r}, v{8+r}')
        e(f'''
  v_cvt_pk_bf16_f32 v16, v96, v97
  v_cvt_pk_bf16_f32 v17, v98, v99
  v_cvt_pk_bf16_f32 v18, v100, v101
  v_cvt_pk_bf16_f32 v19, v102, v103
  s_lshl_b32 s24, s{sDBLK}, 1
  s_add_u32 s24, s24, s31
  s_lshl_b32 s24, s24, 7
  s_add_u32 s24, s24, s30
  s_lshl_b32 s24, s24, 10
  s_add_u32 s24, s24, s{sLOFF}
  s_add_u32 s24, s24, {HT}
  v_permlane16_swap_b32 v16, v18
  v_permlane16_swap_b32 v17, v19
  buffer_store_dwordx4 v[16:19], v2, {WSR}, s24 offen sc1''')

    def b_main(self, which, bg=None, bg_base=None):
        e = self.e
        nks = 16 if which == 1 else 14
        Wf = lambda ks, tl: 128 + (ks*2 + tl)*4
        acc = lambda a, b: 64 + (a*2 + b)*16
        NB = self.o.get('nb', 14)
        Af = lambda n: 8 + 4*(n % NB)
        if which == 1:
            e(f'''
  s_mul_i32 s24, s{sSBLK}, 112
  s_min_u32 s25, s{sW}, 6
  s_lshl_b32 s25, s25, 4
  s_add_u32 s24, s24, s25
  s_load_dwordx4 s[40:43], s[{P_B1}:{P_B1+1}], s24''')
        else:
            self.srd(BR, P_B2, S*2)
            e(f'''
  s_lshl_b32 s24, s{sSBLK}, 7
  v_lshlrev_b32 v5, 1, v1
  buffer_load_ushort v240, v5, {BR}, s24 offen''')
        NT = 128 if which == 1 else 112
        e(f'''
  s_add_u32 s32, s{sPH}, {3 if which == 1 else 4}
  s_lshl_b32 s34, s{sDBLK}, 1
  s_mul_i32 s34, s34, {NT}
  s_mul_i32 s25, s{sW}, {nks}
  s_add_u32 s34, s34, s25
  s_lshl_b32 s34, s34, 10
  s_add_u32 s34, s34, s{sLOFF}
  s_add_u32 s34, s34, {HT if which == 1 else UF}
  s_add_u32 s35, s34, {NT*1024}''')
        self.wgpoll(f'''
  v_and_b32 v3, 3, v1
  v_mul_u32_u24 v3, 7, v3
  v_add_u32 v3, s{sDBLK}, v3
  v_lshlrev_b32 v3, 3, v3
  v_bfe_u32 v5, v1, 2, 3
  v_add_u32 v3, v5, v3
  v_lshlrev_b32 v3, 7, v3''' + (f'''
  v_and_b32 v5, 3, v1
  v_add_u32 v5, 28, v5
  v_lshlrev_b32 v5, 3, v5
  v_bfe_u32 v6, v1, 2, 2
  v_add_u32 v5, v5, v6
  v_lshlrev_b32 v5, 7, v5
  v_cmp_le_u32 vcc, 32, v1
  s_cmp_eq_u32 s{sLAY}, 0
  s_cselect_b64 s[36:37], vcc, 0
  v_cndmask_b32 v3, v3, v5, s[36:37]''' if which == 2 else ''), 32)
        self.stamp(20 if which == 1 else 26)
        if self.o.get('prio'):
            Lp = self.L('L_pr')
            e(f'  s_cmp_lt_u32 s{sW}, 4\n  s_cbranch_scc1 {Lp}\n  s_setprio {self.o["prio"]}\n{Lp}:')
        nfr = 2*nks
        def ld(n):
            ks, dt = n // 2, n % 2
            r = Af(n)
            e(f'  buffer_load_dwordx4 v[{r}:{r+3}], v2, {WSR}, s{34+dt} offen offset:{(ks % 4)*1024} sc1')
            if dt == 1 and ks % 4 == 3: e('  s_add_u32 s34, s34, 4096\n  s_add_u32 s35, s35, 4096')
        issued = 0
        while issued < min(NB, nfr):
            ld(issued); issued += 1
        for ks in range(nks):
            e(f'  s_waitcnt vmcnt({issued - (2*ks + 2)})')
            if ks == 0: self.stamp(21 if which == 1 else 27)
            for dt in range(2):
                x = Af(2*ks + dt)
                for tl in range(2):
                    w = Wf(ks, tl)
                    if which == 1:
                        c = acc(tl, dt); C = '0' if ks == 0 else f'v[{c}:{c+15}]'
                        e(f'  v_mfma_f32_32x32x16_bf16 v[{c}:{c+15}], v[{w}:{w+3}], v[{x}:{x+3}], {C}')
                    else:
                        c = acc(dt, tl); C = '0' if ks == 0 else f'v[{c}:{c+15}]'
                        e(f'  v_mfma_f32_32x32x16_bf16 v[{c}:{c+15}], v[{x}:{x+3}], v[{w}:{w+3}], {C}')
            for _ in range(2):
                if issued < nfr:
                    ld(issued); issued += 1
        if self.o.get('prio'): e('  s_setprio 0')
        self.stamp(22 if which == 1 else 28)
        e(f'''
  v_and_b32 v3, 31, v1
  v_mul_u32_u24 v3, 272, v3
  v_lshrrev_b32 v4, 5, v1
  v_lshl_add_u32 v3, v4, 4, v3
  s_mul_i32 s24, s{sW}, 17408
  v_add_u32 v3, s24, v3''')
        for a in range(2):
            for b in range(2):
                c = acc(a, b)
                for q in range(4):
                    e(f'  ds_write_b128 v3, v[{c+4*q}:{c+4*q+3}] offset:{b*32*272 + a*128 + q*32}')
        e(f'''
  v_mul_u32_u24 v3, 272, v1
  s_lshl_b32 s24, s{sW}, 5
  v_add_u32 v3, s24, v3
  v_add_u32 v5, 69632, v3
  s_waitcnt lgkmcnt(0)
  s_barrier''')
        for p in range(8):
            r = 8 + p*8
            base = 3 if p < 4 else 5
            o = (p % 4)*17408
            e(f'  ds_read_b128 v[{r}:{r+3}], v{base} offset:{o}\n  ds_read_b128 v[{r+4}:{r+7}], v{base} offset:{o+16}')
        if which == 2:
            e(f'  v_add_u32 v6, {RES}, v3\n  ds_read_b128 v[72:75], v6\n  ds_read_b128 v[76:79], v6 offset:16')
        extra = 2 if which == 2 else 0
        bg = list(bg or [])
        if bg_base: bg_base()
        for p in range(1, 8):
            if bg: e(bg.pop(0))
            e(f'  s_waitcnt lgkmcnt({min(15, (7 - p)*2 + extra)})')
            for k in range(8): e(f'  v_add_f32 v{8+k}, v{8+k}, v{8+p*8+k}')
        e('  s_waitcnt lgkmcnt(0)')
        for l in bg: e(l)
        self.stamp(23 if which == 1 else 29)
        if which == 1:
            c0 = -2.0*LOG2E*math.sqrt(2.0/math.pi); c1 = c0*0.044715
            e(f'  s_mov_b32 s24, {f32bits(c0)}\n  s_mov_b32 s25, {f32bits(c1)}')
            for k in range(8):
                src = 40 + k//2
                if k % 2 == 0: e(f'  s_lshl_b32 s26, s{src}, 16')
                else: e(f'  s_and_b32 s26, s{src}, 0xffff0000')
                e(f'  v_add_f32 v{8+k}, s26, v{8+k}')
            for k in range(8): e(f'  v_mul_f32 v{16+k}, v{8+k}, v{8+k}\n  v_mov_b32 v{24+k}, s24')
            for k in range(8): e(f'  v_fmac_f32 v{24+k}, s25, v{16+k}')
            for k in range(8): e(f'  v_mul_f32 v{24+k}, v{24+k}, v{8+k}')
            for k in range(8): e(f'  v_exp_f32 v{24+k}, v{24+k}')
            for k in range(8): e(f'  v_add_f32 v{24+k}, 1.0, v{24+k}')
            for k in range(8): e(f'  v_rcp_f32 v{24+k}, v{24+k}')
            for k in range(8): e(f'  v_mul_f32 v{8+k}, v{8+k}, v{24+k}')
            Ls = self.L('L_b1')
            e(f'''
  v_cvt_pk_bf16_f32 v16, v8, v9
  v_cvt_pk_bf16_f32 v17, v10, v11
  v_cvt_pk_bf16_f32 v18, v12, v13
  v_cvt_pk_bf16_f32 v19, v14, v15
  s_mul_i32 s24, s{sSBLK}, 7
  s_add_u32 s24, s24, s{sW}
  s_lshr_b32 s25, s24, 1
  s_and_b32 s24, s24, 1
  s_lshl_b32 s26, s{sDBLK}, 1
  s_mul_i32 s26, s26, 112
  s_add_u32 s26, s26, s25
  s_lshl_b32 s26, s26, 10
  s_lshl_b32 s24, s24, 9
  s_add_u32 s26, s26, s24
  s_add_u32 s26, s26, s{sLOFF}
  s_add_u32 s26, s26, {UF}
  v_and_b32 v3, 31, v1
  v_lshlrev_b32 v3, 4, v3
  v_lshrrev_b32 v4, 5, v1
  v_mul_u32_u24 v4, {112*1024}, v4
  v_add_u32 v3, v3, v4
  s_cmp_eq_u32 s{sW}, 7
  s_cbranch_scc1 {Ls}
  buffer_store_dwordx4 v[16:19], v3, {WSR}, s26 offen sc1
{Ls}:''')
        else:
            e('  v_lshlrev_b32 v4, 16, v240')
            for k in range(8): e(f'  v_add_f32 v{8+k}, v{8+k}, v4\n  v_add_f32 v{8+k}, v{8+k}, v{72+k}')
            La = self.L('L_b2'); Lb = self.L('L_b2')
            e(f'''
  ds_write_b128 v6, v[8:11]
  ds_write_b128 v6, v[12:15] offset:16
  v_cvt_pk_bf16_f32 v16, v8, v9
  v_cvt_pk_bf16_f32 v17, v10, v11
  v_cvt_pk_bf16_f32 v18, v12, v13
  v_cvt_pk_bf16_f32 v19, v14, v15
  s_cmp_eq_u32 s{sLAY}, 0
  s_cbranch_scc0 {La}
  v_and_b32 v3, 15, v1
  v_lshrrev_b32 v4, 2, v3''')
            self.pi_of(5, 4, 7)
            e(f'''
  s_and_b32 s24, s{sW}, 3
  v_xor_b32 v5, s24, v5
  v_lshl_add_u32 v5, v3, 2, v5
  v_lshlrev_b32 v5, 4, v5
  v_lshrrev_b32 v4, 4, v1
  v_mul_u32_u24 v4, 14336, v4
  v_add_u32 v5, v5, v4
  s_lshl_b32 s24, s{sSBLK}, 2
  s_mul_i32 s24, s24, 14
  s_lshl_b32 s25, s{sDBLK}, 1
  s_add_u32 s24, s24, s25
  s_lshr_b32 s25, s{sW}, 2
  s_add_u32 s24, s24, s25
  s_lshl_b32 s24, s24, 10
  s_add_u32 s24, s24, {ACT0 + X2}''')
            self.lstore([f'  buffer_store_dwordx4 v[16:19], v5, {WSR}, s24 offen'])
            e(f'  s_branch {Lb}\n{La}:')
            self.srd(BR, P_OUT, S*D*2)
            e(f'''
  s_mul_i32 s24, s{sSBLK}, {64*896}
  s_lshl_b32 s25, s{sDBLK}, 7
  s_add_u32 s24, s24, s25
  s_lshl_b32 s25, s{sW}, 4
  s_add_u32 s24, s24, s25
  v_mul_u32_u24 v5, 896, v1
  buffer_store_dwordx4 v[16:19], v5, {BR}, s24 offen
{Lb}:''')

    def build(self):
        e = self.e
        self.prologue()
        self.qkv_w0_issue()
        self.t12_issue(base=86016)
        self.init_flags()
        self.stamp(0)
        self.tlb_warm()
        e('  s_barrier')
        self.publish_init()
        self.stamp(1)
        self.qkv_w0_finish_a(barrier=False)
        self.t12_tr(32, base=86016)
        e('  s_waitcnt lgkmcnt(0)\n  s_barrier')
        self.qkv_x_setup(0)
        self.qkv_x_dma(0, 1)
        self.qkv_x_dma(1, 1)
        self.t12_store(32, sc='')
        self.qkv_w0_finish_b()
        self.qkv_colsum_b()
        self.stamp(2)
        e('  s_branch L_qkv_main')
        e('L_layer:')
        self.stamp(0)
        self.qkv_x_setup(1)
        self.qkv_w1_issue()
        self.wgpoll(f'''
  v_min_u32 v3, 13, v1
  s_lshr_b32 s24, s{sM}, 4
  s_mul_i32 s24, s24, 14
  v_add_u32 v3, s24, v3
  v_lshlrev_b32 v3, 2, v3
  s_lshl_b32 s24, s{sX}, 7
  s_add_u32 s24, s24, {LF_OFF}
  v_add_u32 v3, s24, v3''', sPH)
        self.stamp(3)
        self.qkv_x_dma(0, 1)
        e('  s_waitcnt vmcnt(7)\n  s_barrier')
        self.stamp(1)
        self.qkv_w1_finish()
        self.stamp(2)
        self.qkv_x_dma(1, 1)
        e('L_qkv_main:')
        self.qkv_main()
        self.stamp(6)
        self.signal_g(1)
        self.stamp(7)
        Lh2 = self.L('L_h')
        e(f'  s_cmp_lg_u32 s{sLAY}, 0\n  s_cbranch_scc1 {Lh2}')
        self.res_load()
        self.handshake(VSC + 1024)
        e('  s_waitcnt vmcnt(0) lgkmcnt(0)\n  s_barrier')
        self.res_store()
        self.handshake_read(VSC + 1024)
        Ltf = self.L('L_tf'); Ltg = self.L('L_tf')
        e(f'''
  s_cmp_lg_u32 s{sW}, 0
  s_cbranch_scc1 {Ltf}
  s_lshl_b32 s25, s{sX}, 7
  s_lshl_b32 s26, s{sM}, 2
  s_add_u32 s25, s25, s26
  s_add_u32 s25, s25, {LF_OFF}
  v_mov_b32 v4, 1
  s_mov_b64 exec, 1
  s_cmp_lg_u32 s{sFAST}, 0
  s_cbranch_scc1 {Ltg}
  buffer_wbl2 sc1
  s_waitcnt vmcnt(0)
{Ltg}:''')
        self.local_flag_store(4, 25)
        e(f'  s_mov_b64 exec, -1\n{Ltf}:')
        e(f'{Lh2}:')
        self.stamp(8)
        w1 = self.w_loads(32)
        self.w1_base()
        def att_hook():
            Lc = self.L('L_am')
            e(f'  s_cmp_ge_u32 s{sM}, 28\n  s_cbranch_scc1 {Lc}')
            self.wo_w_dma()
            e(f'{Lc}:')
            Ln = self.L('L_am')
            e(f'  s_cmp_lg_u32 s{sLAY}, 0\n  s_cbranch_scc1 {Ln}')
            e(f'''
  s_lshl_b32 s24, s{sX}, 7
  s_add_u32 s24, s24, {LF_OFF}
  v_and_b32 v3, 31, v1
  v_lshlrev_b32 v3, 2, v3
  v_add_u32 v3, s24, v3''')
            self.poll(3, '1', vtmp=22)
            Li = self.L('L_am')
            e(f'  s_cmp_lg_u32 s{sFAST}, 0\n  s_cbranch_scc1 {Li}\n  buffer_inv sc1\n  s_waitcnt vmcnt(0)\n{Li}:\n{Ln}:')
        bg = list(w1[:12])
        self.att(mid=None, bg=bg, hook=att_hook)
        self.stamp(12)
        self.signal_l(2)
        self.stamp(13)
        e(f'  s_cmp_ge_u32 s{sM}, 28\n  s_cbranch_scc1 L_idle')
        self.wo_main()
        self.stamp(18)
        self.signal_g(3)
        self.stamp(19)
        for l in w1[12:]: e(l)
        w2 = self.w_loads(28)
        self.b_main(1, bg=w2[:8], bg_base=self.w2_base)
        self.stamp(24)
        self.signal_g(4)
        self.stamp(25)
        for l in w2[8:]: e(l)
        self.b_main(2)
        self.stamp(30)
        self.signal_l(5)
        self.stamp(31)
        e('  s_branch L_skip\nL_idle:')
        Lns = self.L('L_ns')
        e(f'''
  s_cmp_lg_u32 s{sLAY}, 0
  s_cbranch_scc1 L_skip
  s_lshl_b32 s61, s{sX}, 2
  s_add_u32 s61, s61, s{sM}
  s_sub_u32 s61, s61, 28
  s_cmp_ge_u32 s61, 16
  s_cbranch_scc1 {Lns}''')
        self.qkv_w0_issue()
        e('  s_waitcnt vmcnt(0)\n  s_barrier')
        self.qkv_w0_finish_a()
        self.qkv_w0_finish_b()
        self.qkv_colsum_b()
        e('  s_nop 15')
        self.qkv_w0_save()
        self.signal_g(4)
        e(f'{Lns}:\n  s_and_b32 s61, s{sM}, 15\n  s_add_u32 s32, s{sPH}, 5')
        self.wgpoll(f'''
  v_min_u32 v3, 13, v1
  s_lshr_b32 s24, s{sM}, 4
  s_mul_i32 s24, s24, 14
  v_add_u32 v3, s24, v3
  v_lshlrev_b32 v3, 2, v3
  s_lshl_b32 s24, s{sX}, 7
  s_add_u32 s24, s24, {LF_OFF}
  v_add_u32 v3, s24, v3''', 32)
        e('L_skip:')
        e(f'''
  s_add_u32 s{sLAY}, s{sLAY}, 1
  s_add_u32 s{sPH}, s{sPH}, 5
  s_add_u32 s{sLOFF}, s{sLOFF}, {LSTRIDE}
  s_cmp_lt_u32 s{sLAY}, 2
  s_cbranch_scc1 L_layer''')
        self.stamp_flush()
        e('L_end:\n  s_endpgm')
        return self.finish()

    def build_prep(self):
        e = self.e
        e(f'''
  s_cmp_ge_u32 s2, 256
  s_cbranch_scc1 LP_end
  s_memrealtime s[86:87]
  s_load_dwordx16 s[64:79], s[0:1], 0
  s_load_dwordx2 s[84:85], s[0:1], 80
  v_lshrrev_b32 v3, 6, v0
  v_and_b32 v1, 63, v0
  v_readfirstlane_b32 s{sW}, v3
  v_lshlrev_b32 v2, 4, v1
  s_waitcnt lgkmcnt(0)''')
        self.srd(WSR, P_WS, WS_SIZE)
        self.t12_issue(base=0)
        L = self.L('LP_z')
        e(f'''
  s_cmp_lg_u32 s{sW}, 0
  s_cbranch_scc1 {L}
  v_mov_b32 v12, 0
  v_mov_b32 v13, 0
  v_mov_b32 v14, 0
  v_mov_b32 v15, 0
  s_lshl_b32 s24, s{sWG}, 8
  s_mov_b64 exec, 0xffff
  buffer_store_dwordx4 v[12:15], v2, {WSR}, s24 offen
  s_mov_b64 exec, -1
{L}:
  s_waitcnt vmcnt(0)''')
        self.t12_process(32, base=0, sc='')
        if self.o.get('ptime'):
            e(f'''
  s_waitcnt vmcnt(0)
  s_memrealtime s[88:89]
  s_waitcnt lgkmcnt(0)
  v_mov_b32 v4, s86
  v_mov_b32 v5, s88
  s_lshl_b32 s24, s{sWG}, 3
  s_add_u32 s24, s24, s{sW}
  s_lshl_b32 s24, s24, 3
  s_add_u32 s24, s24, 0xC0000
  s_mov_b64 exec, 1
  buffer_store_dwordx2 v[4:5], off, {WSR}, s24
  s_mov_b64 exec, -1''')
        e('LP_end:\n  s_endpgm')
    def finish(self):
        body = self.a.text()
        pf = ''
        if self.o.get('codepf', 1):
            pf = f'''  s_lshl_b32 s24, s{sM}, 3
  s_add_u32 s24, s24, s{sW}
  s_lshl_b32 s24, s24, 7
  s_cmp_ge_u32 s24, L_end-{NAME}_kernel-128
  s_cbranch_scc1 L_nopf
  v_add_u32 v4, s24, v2
  s_mov_b64 exec, 0xff
  global_load_dwordx4 v[124:127], v4, s[88:89]
  s_mov_b64 exec, -1
L_nopf:'''
        body = body.replace('  CODEPF', pf)
        head = open(f'cdna_kernels/{NAME}.s.ref').read().split('; Override launch')[0]
        KD = lambda nm, vg: f'''.p2align 6
.amdhsa_kernel {nm}
  .amdhsa_next_free_vgpr {vg}
  .amdhsa_next_free_sgpr 102
  .amdhsa_accum_offset {vg}
  .amdhsa_group_segment_fixed_size 0
  .amdhsa_kernarg_size 88
  .amdhsa_user_sgpr_count 2
  .amdhsa_user_sgpr_kernarg_segment_ptr 1
  .amdhsa_system_sgpr_workgroup_id_x 1
.end_amdhsa_kernel
'''
        return head + f'''; @launch grid=(256,1,1) block=(512,1,1) lds={LDS_TOTAL}
.amdgcn_target "amdgcn-amd-amdhsa--gfx950"
.text
.globl {NAME}_kernel
.p2align 8
.type {NAME}_kernel,@function
{NAME}_kernel:
''' + body + '.section .rodata,"a"\n' + KD(NAME + '_kernel', 256)

if __name__ == '__main__':
    import argparse
    ap = argparse.ArgumentParser()
    ap.add_argument('--timing', action='store_true')
    ap.add_argument('--slow', action='store_true')
    ap.add_argument('--dbgq', action='store_true')
    ap.add_argument('--nb', type=int, default=14)
    ap.add_argument('--prio', type=int, default=0)
    ap.add_argument('-o', default=f'cdna_kernels/{NAME}.s')
    args = ap.parse_args()
    open(args.o, 'w').write(Gen(args.timing, dict(slow=args.slow, dbgq=args.dbgq, nb=args.nb, prio=args.prio)).build())
    print('wrote', args.o)
```

```python
import sys, math, struct
sys.path.insert(0, 'gen')
from asmlib import Asm

NAME = 'interleave_layers__sliding_block__mixer_token_mlp__prompt'
S, D, H, DH, F = 2048, 448, 16, 28, 1792

GF_OFF = 0; XF_OFF = 0x8000; LF_OFF = 0xC000; TS_OFF = 0x40000
WQT = 0x100000
W1T = 0x400000
W2T = 0xC00000
WOT = 0x1400000
ACT0 = 0x2000000; LSTRIDE = 0x1000000
QF = 0x000000; KF = 0x200000; VF = 0x400000; OF = 0x600000
ST = 0x800000; HT = 0x900000; UF = 0xB00000; X2 = 0xD00000
WS_SIZE = 0x10000000

LDS_TOTAL = 163840
RES = 146432
XA, XB = 92160, 0
QL = 57344
KT, VT = 0, 24576
WOL = 65536
VSC = 149504 - 0
VSC = 92160 + 57344
XA = 88064
VSC = 88064 + 57344
VSC = 57344 + 0

sWG, sX, sM, sW, sLAY = 2, 4, 5, 6, 7
WSR = 's[8:11]'; AR = 's[12:15]'; BR = 's[16:19]'; DBGR = 's[20:23]'
sLOFF, sPH, sSBLK, sDBLK, sMQ, sSPIN, sFAST, sWX = 48, 49, 50, 51, 52, 53, 54, 55
P_X, P_WQKV, P_WO, P_W1, P_B1, P_W2, P_B2 = 64, 66, 68, 72, 74, 76, 78
P_OUT, P_DBG, P_WS = 80, 82, 84
LOG2E = 1.4426950408889634
STAMP_NAMES = {0:'start',1:'W dma landed',2:'W regs+colsum',3:'x flags',4:'x ks0-2 landed',5:'qkv mfma done',6:'qkv stores',7:'qkv signal',8:'pre-att',9:'att poll',10:'kv landed',11:'qk done',12:'att end',13:'att signal',14:'wo poll',15:'wo mfma',16:'stats pub',17:'stats poll',18:'wo end',19:'wo signal',20:'b1 poll',21:'b1 first',22:'b1 mfma',23:'b1 red',24:'b1 end',25:'b1 sig',26:'b2 poll',27:'b2 first',28:'b2 mfma',29:'b2 red',30:'b2 end',31:'b2 sig'}
def f32bits(x): return struct.unpack('<I', struct.pack('<f', x))[0]

XA = 86016
VSC = 143360

class Gen:
    def __init__(self, timing=False, opts=None):
        self.a = Asm(); self.timing = timing; self.o = opts or {}
    def e(self, t): self.a.e(t)
    def L(self, b='L'): return self.a.newlabel(b)

    def srd(self, r, ptr, size, off=None):
        lo = int(r[2:r.index(':')])
        if off is None: self.e(f'  s_mov_b32 s{lo}, s{ptr}\n  s_mov_b32 s{lo+1}, s{ptr+1}')
        else: self.e(f'  s_add_u32 s{lo}, s{ptr}, {off}\n  s_addc_u32 s{lo+1}, s{ptr+1}, 0')
        self.e(f'  s_mov_b32 s{lo+2}, {size}\n  s_mov_b32 s{lo+3}, 0x20000')

    def signal_g(self, ph, vm=0):
        L = self.L('L_sig')
        self.e(f'''
  s_waitcnt vmcnt({vm}) lgkmcnt(0)
  s_barrier
  s_cmp_lg_u32 s{sW}, 0
  s_cbranch_scc1 {L}
  s_add_u32 s24, s{sPH}, {ph}
  s_lshl_b32 s25, s{sWG}, 7
  v_mov_b32 v4, s24
  s_mov_b64 exec, 1
  buffer_store_dword v4, off, {WSR}, s25 sc1
  s_mov_b64 exec, -1
{L}:''')
    def lstore(self, lines):
        La = self.L('L_ls'); Lb = self.L('L_ls')
        self.e(f'  s_cmp_eq_u32 s{sFAST}, 0\n  s_cbranch_scc1 {La}')
        for l in lines: self.e(l)
        self.e(f'  s_branch {Lb}\n{La}:')
        for l in lines: self.e(l + ' sc1' if 'buffer_store' in l else l)
        self.e(f'{Lb}:')
    def local_flag_store(self, vdata, soff):
        self.lstore([f'  buffer_store_dword v{vdata}, off, {WSR}, s{soff}'])
    def signal_l(self, ph, vm=0, pre_barrier=None):
        L = self.L('L_sig')
        self.e(f'  s_waitcnt vmcnt({vm}) lgkmcnt(0)\n  s_barrier')
        if pre_barrier: pre_barrier()
        self.e(f'''
  s_cmp_lg_u32 s{sW}, 0
  s_cbranch_scc1 {L}
  s_add_u32 s24, s{sPH}, {ph}
  s_lshl_b32 s25, s{sX}, 7
  s_lshl_b32 s26, s{sM}, 2
  s_add_u32 s25, s25, s26
  s_add_u32 s25, s25, {LF_OFF}
  v_mov_b32 v4, s24
  s_mov_b64 exec, 1''')
        self.local_flag_store(4, 25)
        self.e(f'  s_mov_b64 exec, -1\n{L}:')
    def poll(self, vaddr, tgt, vtmp=4):
        L = self.L('L_poll'); Ld = self.L('L_polld')
        if isinstance(tgt, int): tgt = f's{tgt}'
        self.e(f'''
  s_mov_b32 s{sSPIN}, 0x40000
{L}:
  buffer_load_dword v{vtmp}, v{vaddr}, {WSR}, 0 offen sc1
  s_waitcnt vmcnt(0)
  v_cmp_gt_u32 vcc, {tgt}, v{vtmp}
  s_cbranch_vccz {Ld}
  s_sub_u32 s{sSPIN}, s{sSPIN}, 1
  s_cmp_lg_u32 s{sSPIN}, 0
  s_cbranch_scc1 {L}
{Ld}:''')
    def wgpoll(self, setup, tgt):
        L = self.L('L_wp')
        self.e(f'  s_cmp_lg_u32 s{sW}, 0\n  s_cbranch_scc1 {L}')
        self.e(setup)
        self.poll(3, tgt)
        self.e(f'{L}:\n  s_barrier')
    def stamp(self, idx):
        if not self.timing: return
        self.e(f'''
  s_memrealtime s[46:47]
  s_waitcnt lgkmcnt(0)
  s_lshl_b32 s45, s{sLAY}, 5
  s_add_u32 s45, s45, {idx}
  s_mov_b32 m0, s45
  v_writelane_b32 v0, s46, m0''')
    def stamp_flush(self):
        if not self.timing: return
        self.e(f'''
  s_lshl_b32 s45, s{sWG}, 3
  s_add_u32 s45, s45, s{sW}
  s_lshl_b32 s45, s45, 8
  s_add_u32 s45, s45, {TS_OFF}
  v_lshlrev_b32 v3, 2, v1
  buffer_store_dword v0, v3, {WSR}, s45 offen''')

    def prologue(self):
        e = self.e
        e(f'''
  s_cmp_ge_u32 s2, 256
  s_cbranch_scc1 L_end
{'  s_memrealtime s[86:87]' if self.timing else ''}
  s_load_dwordx16 s[64:79], s[0:1], 0
  s_load_dwordx4 s[80:83], s[0:1], 64
  s_load_dwordx2 s[84:85], s[0:1], 80
  s_getpc_b64 s[88:89]
  s_and_b32 s{sX}, s2, 7
  s_lshr_b32 s{sM}, s2, 3
  v_lshrrev_b32 v3, 6, v0
  v_and_b32 v1, 63, v0
  v_readfirstlane_b32 s{sW}, v3
  v_lshlrev_b32 v2, 4, v1
  CODEPF
  s_mul_i32 s24, s{sM}, 37
  s_lshr_b32 s{sMQ}, s24, 8
  s_mul_i32 s24, s{sMQ}, 7
  s_sub_u32 s{sDBLK}, s{sM}, s24
  s_lshl_b32 s24, s{sX}, 2
  s_add_u32 s{sSBLK}, s24, s{sMQ}
  s_mov_b32 s{sLAY}, 0
  s_mov_b32 s{sPH}, 0
  s_mov_b32 s{sLOFF}, {ACT0}
  s_mov_b32 s{sFAST}, 0
  s_and_b32 s61, s{sM}, 15
  v_mov_b32 v0, 0
  s_waitcnt lgkmcnt(0)
{'  v_writelane_b32 v0, s86, 3' if self.timing else ''}''')
        self.srd(WSR, P_WS, WS_SIZE)
        self.srd(DBGR, P_DBG, 256)

    def init_flags(self):
        e = self.e
        L1 = self.L('L_z'); L2 = self.L('L_z')
        e(f'''
  v_mov_b32 v4, 0
  s_cmp_ge_u32 s{sM}, 28
  s_cbranch_scc1 {L1}
  s_and_b32 s24, s{sW}, 3
  s_lshl_b32 s25, s{sSBLK}, 2
  s_add_u32 s24, s24, s25
  s_lshl_b32 s24, s24, 4
  s_lshr_b32 s25, s{sW}, 2
  s_add_u32 s24, s24, s25
  s_lshl_b32 s25, s{sDBLK}, 1
  s_add_u32 s24, s24, s25
  s_lshl_b32 s24, s24, 2
  s_add_u32 s24, s24, {XF_OFF}
  v_lshlrev_b32 v5, 13, v1
  v_add_u32 v5, s24, v5
  s_mov_b64 exec, 3
  buffer_store_dword v4, v5, {WSR}, 0 offen sc1
  s_mov_b64 exec, -1
{L1}:
  s_cmp_lg_u32 s{sW}, 0
  s_cbranch_scc1 {L2}
  s_lshl_b32 s25, s{sWG}, 7
  s_lshl_b32 s26, s{sX}, 7
  s_lshl_b32 s27, s{sM}, 2
  s_add_u32 s26, s26, s27
  s_add_u32 s26, s26, {LF_OFF}
  s_mov_b64 exec, 1
  buffer_store_dword v4, off, {WSR}, s25 sc1
  buffer_store_dword v4, off, {WSR}, s26 sc1
  s_mov_b64 exec, -1
{L2}:''')
    def publish_init(self):
        L3 = self.L('L_z')
        self.e(f'''
  s_cmp_lg_u32 s{sW}, 0
  s_cbranch_scc1 {L3}
  s_getreg_b32 s24, hwreg(HW_REG_XCC_ID)
  s_and_b32 s24, s24, 15
  s_or_b32 s24, s24, 0x80
  v_mov_b32 v4, s24
  s_mov_b64 exec, 1
  buffer_store_byte v4, off, {DBGR}, s{sWG} sc1
  s_mov_b64 exec, -1
{L3}:''')
    def handshake(self, ldsaddr):
        L = self.L('L_hs'); Ld = self.L('L_hsd'); Ls = self.L('L_hss')
        self.e(f'''
  s_cmp_lg_u32 s{sW}, 0
  s_cbranch_scc1 {Ls}
  v_lshlrev_b32 v5, 2, v1
  s_mov_b32 s{sSPIN}, 0x40000
  s_mov_b32 s24, 0x80808080
{L}:
  buffer_load_dword v4, v5, {DBGR}, 0 offen sc1
  s_waitcnt vmcnt(0)
  v_and_b32 v6, s24, v4
  v_cmp_ne_u32 vcc, s24, v6
  s_cbranch_vccz {Ld}
  s_sub_u32 s{sSPIN}, s{sSPIN}, 1
  s_cmp_lg_u32 s{sSPIN}, 0
  s_cbranch_scc1 {L}
{Ld}:
  v_readlane_b32 s24, v4, 0
  v_readlane_b32 s25, v4, 1
  v_and_b32 v6, 1, v1
  v_cmp_eq_u32 vcc, 0, v6
  v_mov_b32 v7, s25
  v_mov_b32 v6, s24
  v_cndmask_b32 v6, v7, v6, vcc
  v_cmp_ne_u32 vcc, v6, v4
  s_cmp_eq_u64 vcc, 0
  s_cselect_b32 s24, {0 if self.o.get('slow') else 1}, 0
  v_mov_b32 v4, s24
  v_mov_b32 v5, {ldsaddr}
  ds_write_b32 v5, v4
{Ls}:''')
    def handshake_read(self, ldsaddr):
        self.e(f'''
  v_mov_b32 v5, {ldsaddr}
  ds_read_b32 v4, v5
  s_waitcnt lgkmcnt(0)
  v_readfirstlane_b32 s{sFAST}, v4''')
    def res_load(self):
        L4 = self.L('L_res')
        self.srd(BR, P_X, S*D*2)
        self.e(f'''
  s_mul_i32 s24, s{sSBLK}, {64*896}
  s_lshl_b32 s25, s{sDBLK}, 7
  s_add_u32 s24, s24, s25
  s_lshl_b32 s25, s{sW}, 4
  s_add_u32 s24, s24, s25
  s_cmp_ge_u32 s{sM}, 28
  s_cselect_b32 s24, 0, s24
  v_mul_u32_u24 v5, 896, v1
  buffer_load_dwordx4 v[32:35], v5, {BR}, s24 offen''')
    def res_store(self):
        self.e(f'''
  v_mul_u32_u24 v6, 272, v1
  s_lshl_b32 s25, s{sW}, 5
  s_add_u32 s25, s25, {RES}
  v_add_u32 v6, s25, v6
  v_lshlrev_b32 v12, 16, v32
  v_and_b32 v13, 0xffff0000, v32
  v_lshlrev_b32 v14, 16, v33
  v_and_b32 v15, 0xffff0000, v33
  v_lshlrev_b32 v16, 16, v34
  v_and_b32 v17, 0xffff0000, v34
  v_lshlrev_b32 v18, 16, v35
  v_and_b32 v19, 0xffff0000, v35
  ds_write_b128 v6, v[12:15]
  ds_write_b128 v6, v[16:19] offset:16''')

    Wq = staticmethod(lambda ks, tt: 88 + (ks*3 + tt)*4)
    def qkv_w0_issue(self):
        e = self.e
        self.srd(AR, P_WQKV, D*3*D*2)
        for p in range(3):
            e(f'''
  v_add_u32 v3, {p*64}, v1
  v_mul_u32_u24 v4, 171, v3
  v_lshrrev_b32 v4, 11, v4
  v_mul_u32_u24 v5, 12, v4
  v_sub_u32 v5, v3, v5
  v_lshrrev_b32 v6, 2, v5
  v_and_b32 v5, 3, v5
  v_bfe_u32 v7, v4, 3, 1
  v_lshlrev_b32 v7, 1, v7
  v_xor_b32 v5, v5, v7
  v_mul_u32_u24 v4, 2688, v4
  v_mul_u32_u24 v6, 896, v6
  v_lshlrev_b32 v5, 4, v5
  v_add3_u32 v{8+p}, v4, v5, v6''')
        Lskip = self.L('L_qw')
        e(f'''
  s_mul_i32 s24, s61, 56
  s_mul_i32 s25, s{sW}, {16*2688}
  s_add_u32 s24, s24, s25
  s_mul_i32 s26, s{sW}, 3072''')
        for gi in range(4):
            if gi == 3: e(f'  s_cmp_ge_u32 s{sW}, 4\n  s_cbranch_scc1 {Lskip}')
            for p in range(3):
                e(f'''
  s_add_u32 m0, s26, {gi*8*3072 + p*1024}
  s_add_u32 s27, s24, {gi*8*16*2688}
  buffer_load_dwordx4 v{8+p}, {AR}, s27 offen lds''')
        e(f'{Lskip}:')
    def qkv_w0_finish_a(self, barrier=True):
        e = self.e; Wf = self.Wq
        e(f'''
  v_lshrrev_b32 v3, 4, v1
  v_bfe_u32 v4, v1, 2, 2
  v_lshl_add_u32 v4, v3, 3, v4
  v_mul_u32_u24 v4, 192, v4
  v_and_b32 v5, 1, v1
  v_lshl_add_u32 v4, v5, 3, v4
  v_bfe_u32 v5, v1, 1, 1
  v_and_b32 v6, 1, v3
  v_lshlrev_b32 v6, 1, v6
  v_xor_b32 v5, v5, v6
  v_xor_b32 v6, 2, v5
  v_lshl_add_u32 v24, v5, 4, v4
  v_lshl_add_u32 v25, v6, 4, v4
  s_and_b32 s24, s{sW}, 1
  s_cmp_eq_u32 s24, 0
  s_cselect_b64 vcc, -1, 0
  s_lshl_b32 s25, s24, 6
  v_cndmask_b32 v26, v25, v24, vcc
  v_add_u32 v26, 128, v26
  v_add_u32 v24, s25, v24
  v_add_u32 v25, s25, v25''')
        for ks in range(14):
            if ks == 8: e('  v_add_u32 v24, 49152, v24\n  v_add_u32 v25, 49152, v25\n  v_add_u32 v26, 49152, v26')
            o = (ks % 8)*6144
            for tt in range(3):
                r = Wf(ks, tt)
                e(f'  ds_read_b64_tr_b16 v[{r}:{r+1}], v{24+tt} offset:{o}\n  ds_read_b64_tr_b16 v[{r+2}:{r+3}], v{24+tt} offset:{o+768}')
            if ks % 2 == 1: e('  s_waitcnt lgkmcnt(6)')
        if barrier: e('  s_waitcnt lgkmcnt(0)\n  s_barrier')
    def qkv_w0_finish_b(self):
        e = self.e; Wf = self.Wq
        e('''
  v_and_b32 v3, 15, v1
  v_cmp_eq_u32 vcc, 12, v3
  v_mov_b32 v4, 0x3f803f80''')
        for ks in range(14):
            r = Wf(ks, 1)
            for k in range(4): e(f'  v_cndmask_b32 v{r+k}, v{r+k}, v4, vcc')
    def qkv_colsum_a(self):
        pass
    def qkv_colsum_b(self):
        e = self.e; Wf = self.Wq
        e('''
  s_nop 4
  v_mov_b32 v84, 0x3f803f80
  v_mov_b32 v85, 0x3f803f80
  v_mov_b32 v86, 0x3f803f80
  v_mov_b32 v87, 0x3f803f80''')
        for ks in range(14):
            for tt in range(3):
                r = Wf(ks, tt); c = 52 + tt*4
                C = '0' if ks == 0 else f'v[{c}:{c+3}]'
                if tt < 2: e(f'  v_mfma_f32_16x16x32_bf16 v[{c}:{c+3}], v[{r}:{r+3}], v[84:87], {C}')
                else: e(f'  v_mfma_f32_16x16x32_bf16 v[{c}:{c+3}], v[84:87], v[{r}:{r+3}], {C}')
    def qkv_w0_save(self):
        e = self.e
        L = self.L('L_qs')
        e(f'''
  s_cmp_ge_u32 s{sW}, 2
  s_cbranch_scc1 {L}
  s_lshl_b32 s24, s61, 1
  s_add_u32 s24, s24, s{sW}
  s_mul_i32 s24, s24, {45*1024}
  s_add_u32 s24, s24, {WQT}''')
        regs = [88 + 4*n for n in range(42)] + [52, 56, 60]
        for n, r in enumerate(regs):
            e(f'  buffer_store_dwordx4 v[{r}:{r+3}], v2, {WSR}, s24 offen offset:{(n % 4)*1024} sc1')
            if n % 4 == 3: e('  s_add_u32 s24, s24, 4096')
        e(f'{L}:')
    def qkv_w1_issue(self):
        e = self.e
        L = self.L('L_qw1')
        e(f'''
  s_and_b32 s24, s{sM}, 15
  s_mul_i32 s24, s24, {90*1024}
  s_add_u32 s24, s24, {WQT}
  s_and_b32 s25, s{sW}, 1
  s_mul_i32 s27, s25, {45*1024}
  s_add_u32 s24, s24, s27
  s_mul_i32 s26, s25, {42*1024}
  s_add_u32 s28, s24, {42*1024}
  buffer_load_dwordx4 v[52:55], v2, {WSR}, s28 offen sc1
  buffer_load_dwordx4 v[56:59], v2, {WSR}, s28 offen offset:1024 sc1
  buffer_load_dwordx4 v[60:63], v2, {WSR}, s28 offen offset:2048 sc1
  s_lshr_b32 s25, s{sW}, 1             ; i = 0..3 : frags n = i, i+4, ...
  s_lshl_b32 s25, s25, 10
  s_add_u32 s24, s24, s25
  s_add_u32 s26, s26, s25''')
        for n in range(11):
            if n == 10: e(f'  s_cmp_ge_u32 s{sW}, 4\n  s_cbranch_scc1 {L}')
            e(f'''
  s_add_u32 m0, s26, {n*4096}
  s_add_u32 s27, s24, {n*4096}
  buffer_load_dwordx4 v2, {WSR}, s27 offen sc1 lds''')
        e(f'{L}:')
    def qkv_w1_finish(self):
        e = self.e
        e(f'''
  s_and_b32 s24, s{sW}, 1
  s_mul_i32 s24, s24, {42*1024}
  v_add_u32 v24, s24, v2''')
        regs = [88 + 4*n for n in range(42)]
        for n, r in enumerate(regs):
            e(f'  ds_read_b128 v[{r}:{r+3}], v24 offset:{n*1024}')
            if n % 8 == 7: e('  s_waitcnt lgkmcnt(6)')
        e('  s_waitcnt lgkmcnt(0)\n  s_barrier')
    def pi_of(self, dst, src_hi, tmp):
        self.e(f'  v_lshlrev_b32 v{tmp}, 1, v{src_hi}\n  v_mov_b32 v{dst}, 0x78\n  v_lshrrev_b32 v{dst}, v{tmp}, v{dst}\n  v_and_b32 v{dst}, 3, v{dst}')
    def qkv_x_setup(self, layer):
        e = self.e
        if layer == 0:
            self.srd(AR, P_X, S*D*2)
            e('  v_lshrrev_b32 v3, 2, v1\n  v_lshrrev_b32 v4, 2, v3')
            self.pi_of(5, 4, 6)
            e('''
  v_and_b32 v6, 3, v1
  v_xor_b32 v5, v5, v6
  v_mul_u32_u24 v3, 896, v3
  v_lshl_add_u32 v27, v5, 4, v3
  s_mov_b32 s38, 64''')
        else:
            self.srd(AR, P_WS, S*D*2, off=ACT0 + X2)
            e('  v_mov_b32 v27, v2\n  s_mov_b32 s38, 1024')
        e(f'''
  s_lshl_b32 s24, s{sX}, 4
  s_lshr_b32 s25, s{sM}, 4
  s_lshl_b32 s25, s25, 3
  s_add_u32 s24, s24, s25
  s_add_u32 s24, s24, s{sW}
  s_mul_i32 s39, s24, 14336''')
    def qkv_x_dma(self, part, layer):
        e = self.e
        base = XA if part == 0 else XB
        fl = 'sc1 ' if layer else ''
        e(f'  s_mul_i32 s26, s{sW}, 7168\n  s_mul_i32 s27, s38, {7*part}\n  s_add_u32 s27, s27, s39')
        for k in range(7):
            e(f'''
  s_add_u32 m0, s26, {base + k*1024}
  s_nop 0
  buffer_load_dwordx4 v27, {AR}, s27 offen {fl}lds
  s_add_u32 s27, s27, s38''')
    def qkv_main(self):
        e = self.e; Wf = self.Wq
        acc = lambda rt, tt: 64 + (rt*3 + tt)*4
        xf = lambda b, rt: 36 + (b*2 + rt)*4
        GR = 32
        e('  v_and_b32 v3, 15, v1\n  v_lshrrev_b32 v4, 2, v3')
        self.pi_of(5, 4, 6)
        e(f'''
  v_lshrrev_b32 v6, 4, v1
  v_xor_b32 v5, v5, v6
  v_lshl_add_u32 v5, v3, 2, v5
  v_lshlrev_b32 v5, 4, v5
  s_lshr_b32 s24, s{sW}, 1
  s_mul_i32 s24, s24, 14336
  v_add_u32 v29, s24, v5
  v_add_u32 v28, {XA}, v29
  s_and_b32 s31, s{sW}, 1
  s_mul_i32 s25, s31, 7168
  v_add_u32 v30, s25, v28
  v_add_u32 v31, s25, v29''')
        def rd(ks):
            b = ks & 1
            for rt in range(2):
                r = xf(b, rt)
                if ks < 7: e(f'  ds_read_b128 v[{r}:{r+3}], v28 offset:{rt*7168 + ks*1024}')
                else: e(f'  ds_read_b128 v[{r}:{r+3}], v29 offset:{XB + rt*7168 + (ks-7)*1024}')
            g = 16 + 4*b
            if ks < 7: e(f'  ds_read_b128 v[{g}:{g+3}], v30 offset:{ks*1024}')
            else: e(f'  ds_read_b128 v[{g}:{g+3}], v31 offset:{XB + (ks-7)*1024}')
        stages = {0: 11, 3: 7, 7: 3, 11: 0}
        for ks in range(14):
            if ks in stages:
                La = self.L('L_sw'); Lb = self.L('L_sw')
                e(f'  s_waitcnt vmcnt({stages[ks]})\n  s_barrier')
                if ks == 0: self.stamp(4)
                rd(ks)
            if ks + 1 < 14 and (ks + 1) not in stages:
                rd(ks + 1); e('  s_waitcnt lgkmcnt(3)')
            else:
                e('  s_waitcnt lgkmcnt(0)')
            b = ks & 1
            for rt in range(2):
                x = xf(b, rt)
                for tt in range(3):
                    w = Wf(ks, tt); c = acc(rt, tt)
                    C = '0' if ks == 0 else f'v[{c}:{c+3}]'
                    if tt < 2: e(f'  v_mfma_f32_16x16x32_bf16 v[{c}:{c+3}], v[{w}:{w+3}], v[{x}:{x+3}], {C}')
                    else: e(f'  v_mfma_f32_16x16x32_bf16 v[{c}:{c+3}], v[{x}:{x+3}], v[{w}:{w+3}], {C}')
            g = 16 + 4*b
            C = '0' if ks == 0 else f'v[{GR}:{GR+3}]'
            e(f'  v_mfma_f32_16x16x32_bf16 v[{GR}:{GR+3}], v[{g}:{g+3}], v[{g}:{g+3}], {C}')
        self.stamp(5)
        e(f'''
  v_and_b32 v3, 15, v1
  v_and_b32 v4, 3, v3
  v_lshrrev_b32 v5, 2, v3
  v_lshrrev_b32 v6, 4, v1
  v_cmp_eq_u32 s[28:29], 1, v4
  v_cmp_eq_u32 s[32:33], 2, v4
  v_cmp_eq_u32 s[34:35], 3, v4
  v_cmp_eq_u32 s[36:37], v5, v6
  v_cndmask_b32 v7, v{GR}, v{GR+1}, s[28:29]
  v_cndmask_b32 v7, v7, v{GR+2}, s[32:33]
  v_cndmask_b32 v7, v7, v{GR+3}, s[34:35]
  v_cndmask_b32 v7, 0, v7, s[36:37]
  s_cmp_eq_u32 s31, 0
  s_cselect_b64 vcc, -1, 0
  v_cndmask_b32 v8, v{acc(1,1)}, v{acc(0,1)}, vcc
  v_cmp_le_u32 s[28:29], 48, v1
  v_cndmask_b32 v8, 0, v8, s[28:29]
  v_mov_b32 v9, v7
  v_mov_b32 v10, v8
  v_permlane32_swap_b32 v9, v7
  v_permlane32_swap_b32 v10, v8
  v_add_f32 v7, v9, v7
  v_add_f32 v8, v10, v8
  v_mov_b32 v9, v7
  v_mov_b32 v10, v8
  v_permlane16_swap_b32 v9, v7
  v_permlane16_swap_b32 v10, v8
  v_add_f32 v7, v9, v7
  v_add_f32 v8, v10, v8
  s_mov_b32 s24, {f32bits(1.0/448)}
  s_mov_b32 s25, {f32bits(1e-5)}
  v_mul_f32 v8, s24, v8
  v_mul_f32 v7, s24, v7
  v_fma_f32 v7, -v8, v8, v7
  v_max_f32 v7, 0, v7
  v_add_f32 v7, s25, v7
  v_rsq_f32 v9, v7
  s_lshr_b32 s26, s{sW}, 1
  s_lshl_b32 s26, s26, 8
  s_add_u32 s26, s26, {VSC}
  s_lshl_b32 s27, s31, 7
  s_add_u32 s27, s27, s26
  v_lshlrev_b32 v3, 3, v3
  v_add_u32 v4, s27, v3
  v_add_u32 v3, s26, v3
  ds_write_b64 v4, v[8:9]
  v_lshrrev_b32 v4, 4, v1
  v_lshlrev_b32 v4, 5, v4
  v_add_u32 v4, s26, v4
  s_waitcnt lgkmcnt(0)
  s_barrier
  ds_read_b64 v[32:33], v3
  ds_read_b64 v[34:35], v3 offset:128
  ds_read_b128 v[36:39], v4
  ds_read_b128 v[40:43], v4 offset:16
  ds_read_b128 v[44:47], v4 offset:128
  ds_read_b128 v[48:51], v4 offset:144''')
        qs = (DH ** -0.5) * LOG2E
        e(f'''
  s_cmp_eq_u32 s31, 0
  s_cselect_b32 s25, {f32bits(qs)}, 1.0
  s_cselect_b32 s27, 0x3f80, 0
  v_mov_b32 v7, s27
  v_cmp_le_u32 s[28:29], 48, v1
  s_waitcnt lgkmcnt(4)
  v_mul_f32 v5, s25, v33
  v_mul_f32 v6, s25, v35''')
        for rt in range(2):
            mu = 32 + 2*rt; rr = 5 + rt
            for tt in range(2):
                c = acc(rt, tt); cs = 52 + tt*4
                for r in range(4):
                    e(f'  v_fma_f32 v{c+r}, -v{mu}, v{cs+r}, v{c+r}\n  v_mul_f32 v{c+r}, v{rr}, v{c+r}')
            o = 8 + rt*4
            a0, a1 = acc(rt, 0), acc(rt, 1)
            e(f'''
  v_cvt_pk_bf16_f32 v{o}, v{a0}, v{a0+1}
  v_cvt_pk_bf16_f32 v{o+1}, v{a0+2}, v{a0+3}
  v_cvt_pk_bf16_f32 v{o+2}, v{a1}, v{a1+1}
  v_cvt_pk_bf16_f32 v{o+3}, v{a1+2}, v{a1+3}
  v_cndmask_b32 v{o+2}, v{o+2}, v7, s[28:29]
  v_cndmask_b32 v{o+3}, v{o+3}, 0, s[28:29]''')
        La = self.L('L_qk'); Lb = self.L('L_qk')
        e(f'''
  s_and_b32 s24, s{sM}, 15
  s_lshl_b32 s25, s24, 7
  s_lshl_b32 s26, s{sX}, 4
  s_add_u32 s25, s25, s26
  s_lshr_b32 s26, s{sM}, 4
  s_lshl_b32 s26, s26, 3
  s_add_u32 s25, s25, s26
  s_lshr_b32 s26, s{sW}, 1
  s_lshl_b32 s26, s26, 1
  s_add_u32 s25, s25, s26
  s_lshl_b32 s30, s25, 10
  s_add_u32 s30, s30, s{sLOFF}
  s_cmp_eq_u32 s31, 0
  s_cbranch_scc0 {La}
  s_lshl_b32 s26, s26, 10
  s_add_u32 s26, s26, {QL}
  v_add_u32 v3, s26, v2
  ds_write_b128 v3, v[8:11]
  ds_write_b128 v3, v[12:15] offset:1024''')
        if self.o.get('dbgq'):
            e(f'  buffer_store_dwordx4 v[8:11], v2, {WSR}, s30 offen sc1\n  buffer_store_dwordx4 v[12:15], v2, {WSR}, s30 offen offset:1024 sc1')
        e(f'''
  s_branch {Lb}
{La}:
  s_add_u32 s27, s30, {KF}
  buffer_store_dwordx4 v[8:11], v2, {WSR}, s27 offen sc1
  buffer_store_dwordx4 v[12:15], v2, {WSR}, s27 offen offset:1024 sc1
{Lb}:
  s_lshl_b32 s26, s31, 10
  s_add_u32 s27, s30, s26
  s_add_u32 s27, s27, {VF}
  v_and_b32 v3, 15, v1
  v_cmp_le_u32 s[28:29], 12, v3
  s_cmp_eq_u32 s31, 1
  s_cselect_b64 s[28:29], s[28:29], 0
  v_cmp_eq_u32 vcc, 12, v3
  v_mov_b32 v7, 0x3f803f80
  s_nop 0
  v_cndmask_b32 v7, 0, v7, vcc
  s_waitcnt lgkmcnt(0)''')
        for rt in range(2):
            c = acc(rt, 2)
            for r in range(4):
                mu = 36 + rt*8 + 2*r
                e(f'  v_fma_f32 v{c+r}, -v{mu}, v60, v{c+r}\n  v_mul_f32 v{c+r}, v{mu+1}, v{c+r}')
            o = 16 + rt*2
            e(f'''
  v_cvt_pk_bf16_f32 v{o}, v{c}, v{c+1}
  v_cvt_pk_bf16_f32 v{o+1}, v{c+2}, v{c+3}
  v_cndmask_b32 v{o}, v{o}, v7, s[28:29]
  v_cndmask_b32 v{o+1}, v{o+1}, v7, s[28:29]''')
        e(f'  buffer_store_dwordx4 v[16:19], v2, {WSR}, s27 offen sc1')

    def tlb_warm(self):
        e = self.e
        L = self.L('L_tw'); L2 = self.L('L_tw')
        e(f'  s_cmp_lg_u32 s{sW}, 6\n  s_cbranch_scc1 {L}')
        e(f'  v_lshlrev_b32 v3, 21, v1\n  s_mov_b64 exec, 0xffffffff\n  buffer_load_dword v11, v3, {WSR}, 0 offen\n  s_mov_b64 exec, 0xf')
        self.srd(BR, P_W1, S*F*2)
        e(f'  buffer_load_dword v12, v3, {BR}, 0 offen')
        self.srd(BR, P_W2, S*F*2)
        e(f'  s_nop 4\n  buffer_load_dword v13, v3, {BR}, 0 offen\n  s_mov_b64 exec, 1')
        self.srd(BR, P_WO, D*D*2)
        e(f'  buffer_load_dword v14, v3, {BR}, 0 offen')
        self.srd(BR, P_OUT, S*D*2)
        e(f'  buffer_load_dword v15, v3, {BR}, 0 offen\n  s_mov_b64 exec, -1')
        e(f'  s_waitcnt vmcnt(5)\n  s_branch {L2}\n{L}:\n  s_waitcnt vmcnt(0)\n{L2}:')
    def two_addr(self):
        e = self.e
        self.srd(BR, P_WO, D*D*2)
        e(f'''
  s_lshr_b32 s43, s{sWG}, 4
  s_and_b32 s40, s{sWG}, 15
  v_lshrrev_b32 v3, 3, v1
  v_and_b32 v4, 7, v1
  v_bfe_u32 v5, v3, 1, 2
  v_lshlrev_b32 v5, 1, v5
  v_xor_b32 v4, v4, v5
  v_mul_u32_u24 v5, 896, v3
  v_lshl_add_u32 v9, v4, 4, v5
  v_mov_b32 v6, 0x7ff00000
  v_cmp_le_u32 vcc, 4, v3
  s_nop 1
  v_cndmask_b32 v10, v9, v6, vcc
  s_mul_i32 s40, s40, {28*896}
  s_lshl_b32 s43, s43, 7
  s_add_u32 s40, s40, s43
  s_lshl_b32 s59, s{sWG}, 12
  s_add_u32 s59, s59, {WOT}''')
    def two_load(self):
        e = self.e
        L = self.L('L_two')
        e(f'  s_cmp_lg_u32 s{sW}, 7\n  s_cbranch_scc1 {L}\n  s_cmp_ge_u32 s{sWG}, 112\n  s_cbranch_scc1 {L}')
        self.two_addr()
        for n4 in range(4):
            r = 68 + 4*n4
            e(f'  s_add_u32 s27, s40, {n4*8*896}\n  buffer_load_dwordx4 v[{r}:{r+3}], v{10 if n4 == 3 else 9}, {BR}, s27 offen')
        e(f'{L}:')
    def two_process(self):
        e = self.e
        L = self.L('L_two')
        TB = 143360
        e(f'''
  s_cmp_lg_u32 s{sW}, 7
  s_cbranch_scc1 {L}
  s_cmp_ge_u32 s{sWG}, 112
  s_cbranch_scc1 {L}
  v_add_u32 v28, {TB}, v2
  v_lshrrev_b32 v3, 4, v1
  v_bfe_u32 v4, v1, 2, 2
  v_lshl_add_u32 v5, v3, 2, v4
  v_bfe_u32 v6, v5, 1, 2
  v_lshlrev_b32 v5, 7, v5
  v_and_b32 v7, 1, v1
  v_lshl_add_u32 v5, v7, 3, v5
  v_bfe_u32 v7, v1, 1, 1
  v_lshl_add_u32 v5, v7, 4, v5
  v_add_u32 v5, {TB}, v5''')
        wb = [29, 30, 31, 26]
        for nt in range(4):
            e(f'  v_xor_b32 v7, {nt}, v6\n  v_lshl_add_u32 v{wb[nt]}, v7, 5, v5')
        for hf in range(2):
            q0 = 68 + 8*hf
            e(f'  ds_write_b128 v28, v[{q0}:{q0+3}]\n  ds_write_b128 v28, v[{q0+4}:{q0+7}] offset:1024\n  s_waitcnt lgkmcnt(0)')
            for nt in range(4):
                r = 8 + 4*nt + 2*hf
                e(f'  ds_read_b64_tr_b16 v[{r}:{r+1}], v{wb[nt]}')
            e('  s_waitcnt lgkmcnt(0)')
        for nt in range(4):
            e(f'  buffer_store_dwordx4 v[{8+4*nt}:{11+4*nt}], v2, {WSR}, s59 offen offset:{nt*1024} sc1')
        e(f'{L}:')

    def t12_issue(self, touch=False, base=65536):
        e = self.e
        self.srd(AR, P_W1, S*F*2)
        self.srd(BR, P_W2, F*S*2)
        e(f'''
  v_lshrrev_b32 v3, 3, v1
  v_and_b32 v4, 7, v1
  v_bfe_u32 v5, v3, 1, 1
  v_lshlrev_b32 v5, 2, v5
  v_xor_b32 v4, v4, v5
  v_mul_u32_u24 v5, {F*2}, v3
  v_lshl_add_u32 v8, v4, 4, v5
  v_mul_u32_u24 v5, {S*2}, v3
  v_lshl_add_u32 v9, v4, 4, v5
  s_lshl_b32 s30, s{sM}, 2
  s_lshr_b32 s31, s{sW}, 1
  s_add_u32 s30, s30, s31               ; ks = (m*8+w)>>1
  s_and_b32 s31, s{sW}, 1
  s_lshl_b32 s31, s31, 1
  s_lshl_b32 s32, s{sX}, 2
  s_add_u32 s31, s31, s32
  s_mul_i32 s33, s30, {16*F*2}
  s_mul_i32 s34, s31, 112
  s_add_u32 s33, s33, s34               ; w1 src
  s_min_u32 s35, s30, 111
  s_mul_i32 s35, s35, {16*S*2}
  s_lshl_b32 s34, s31, 7
  s_add_u32 s35, s35, s34               ; w2 src
  s_lshl_b32 s26, s{sW}, 13
  s_add_u32 s26, s26, {base}''')
        for b in range(2):
            for n in range(2):
                e(f'''
  {'s_mov_b32 m0, 145408' if touch else f's_add_u32 m0, s26, {b*2048 + n*1024}'}
  s_add_u32 s27, s33, {b*112 + n*8*F*2}
  buffer_load_dwordx4 v8, {AR}, s27 offen lds''')
        for b in range(2):
            for n in range(2):
                e(f'''
  {'s_mov_b32 m0, 145408' if touch else f's_add_u32 m0, s26, {4096 + b*2048 + n*1024}'}
  s_add_u32 s27, s35, {b*128 + n*8*S*2}
  buffer_load_dwordx4 v9, {BR}, s27 offen lds''')
    def t12_tr(self, regs0, base=65536):
        e = self.e
        e(f'''
  s_lshl_b32 s26, s{sW}, 13
  s_add_u32 s26, s26, {base}
  v_lshrrev_b32 v23, 4, v1
  v_bfe_u32 v24, v1, 2, 2
  v_lshrrev_b32 v25, 1, v23
  v_lshl_add_u32 v25, v25, 3, v24
  v_lshlrev_b32 v25, 7, v25
  v_and_b32 v26, 1, v1
  v_lshl_add_u32 v25, v26, 3, v25
  v_bfe_u32 v26, v1, 1, 1
  v_and_b32 v27, 1, v23
  v_lshl_add_u32 v26, v27, 1, v26
  v_lshl_add_u32 v25, v26, 4, v25
  v_add_u32 v25, s26, v25
  v_lshrrev_b32 v26, 1, v24
  v_lshl_add_u32 v23, v26, 6, v25
  v_xor_b32 v26, 1, v26
  v_lshl_add_u32 v24, v26, 6, v25''')
        for blk in range(4):
            for tl in range(2):
                r = regs0 + (blk*2 + tl)*4
                e(f'  ds_read_b64_tr_b16 v[{r}:{r+1}], v{23+tl} offset:{blk*2048}\n  ds_read_b64_tr_b16 v[{r+2}:{r+3}], v{23+tl} offset:{blk*2048+512}')
    def t12_store(self, regs0, sc='sc1'):
        e = self.e
        L = self.L('L_t12')
        e(f'''
  s_lshl_b32 s30, s{sM}, 2
  s_lshr_b32 s31, s{sW}, 1
  s_add_u32 s30, s30, s31
  s_and_b32 s31, s{sW}, 1
  s_lshl_b32 s31, s31, 1
  s_lshl_b32 s32, s{sX}, 2
  s_add_u32 s31, s31, s32
  s_lshl_b32 s33, s31, 7
  s_add_u32 s33, s33, s30
  s_lshl_b32 s33, s33, 11
  s_add_u32 s33, s33, {W1T}
  s_add_u32 s34, s33, {128*2048}
  s_mul_i32 s35, s31, 112
  s_add_u32 s35, s35, s30
  s_lshl_b32 s35, s35, 11
  s_add_u32 s35, s35, {W2T}
  s_add_u32 s36, s35, {112*2048}
  s_waitcnt lgkmcnt(0)''')
        for b in range(2):
            for tl in range(2):
                r = regs0 + (b*2 + tl)*4
                e(f'  buffer_store_dwordx4 v[{r}:{r+3}], v2, {WSR}, s{33+b} offen offset:{tl*1024} {sc}')
        e(f'  s_cmp_ge_u32 s30, 112\n  s_cbranch_scc1 {L}')
        for b in range(2):
            for tl in range(2):
                r = regs0 + 16 + (b*2 + tl)*4
                e(f'  buffer_store_dwordx4 v[{r}:{r+3}], v2, {WSR}, s{35+b} offen offset:{tl*1024} {sc}')
        e(f'{L}:')

    def t12_process(self, regs0, base=65536, sc='sc1'):
        self.t12_tr(regs0, base)
        self.t12_store(regs0, sc)

    def w_loads(self, n):
        out = []
        for k in range(n):
            r = 128 + 4*k
            s = f'  buffer_load_dwordx4 v[{r}:{r+3}], v2, {WSR}, s56 offen offset:{(k % 4)*1024} sc1'
            if k % 4 == 3: s += '\n  s_add_u32 s56, s56, 4096'
            out.append(s)
        return out
    def w1_base(self):
        self.e(f'''
  s_lshl_b32 s56, s{sSBLK}, 18
  s_lshl_b32 s57, s{sW}, 15
  s_add_u32 s56, s56, s57
  s_add_u32 s56, s56, {W1T}''')
    def w2_base(self):
        self.e(f'''
  s_mul_i32 s56, s{sSBLK}, {112*2048}
  s_mul_i32 s57, s{sW}, {28*1024}
  s_add_u32 s56, s56, s57
  s_add_u32 s56, s56, {W2T}''')

    def att(self, mid=None, bg=None, hook=None):
        e = self.e
        Sx = lambda n: 32 + 4*n
        NS = 6
        FR = lambda n: 104 + 4*(n % NS)
        e(f'''
  v_and_b32 v16, 15, v1
  v_lshrrev_b32 v17, 4, v1
  v_lshlrev_b32 v17, 2, v17
  v_mov_b32 v18, 0xf149f2ca
  s_and_b32 s35, s{sW}, 1
  s_cmp_eq_u32 s35, 0
  s_cselect_b64 s[36:37], -1, 0''')
        for r in range(4):
            e(f'''
  v_add_u32 v19, {r}, v17
  v_cmp_gt_u32 vcc, v19, v16
  s_nop 1
  v_cndmask_b32 v20, v18, 0, vcc
  v_cndmask_b32 v21, 0, v18, vcc
  v_cndmask_b32 v{Sx(0)+r}, v18, v20, s[36:37]
  v_cndmask_b32 v{Sx(1)+r}, v20, 0, s[36:37]
  v_cndmask_b32 v{Sx(16)+r}, 0, v21, s[36:37]
  v_cndmask_b32 v{Sx(17)+r}, v21, v18, s[36:37]''')
        e(f'''
  s_lshl_b32 s24, s{sX}, 1
  s_lshr_b32 s25, s{sM}, 4
  s_add_u32 s28, s24, s25
  s_and_b32 s29, s{sM}, 15
  s_add_u32 s30, s{sPH}, 1
  s_lshl_b32 s33, s{sW}, 10
  s_add_u32 s33, s33, {QL}
  v_add_u32 v19, s33, v2
  ds_read_b128 v[4:7], v19''')
        self.wgpoll(f'''
  v_min_u32 v3, 2, v1
  v_sub_u32 v3, s28, v3
  v_max_i32 v3, 0, v3
  v_and_b32 v22, 1, v3
  v_lshlrev_b32 v22, 4, v22
  v_add_u32 v22, s29, v22
  v_lshlrev_b32 v22, 3, v22
  v_lshrrev_b32 v3, 1, v3
  v_add_u32 v3, v3, v22
  v_lshlrev_b32 v3, 7, v3
  v_mov_b32 v23, v4''', 30) if False else None
        L = self.L('L_wp')
        e(f'''
  s_cmp_lg_u32 s{sW}, 0
  s_cbranch_scc1 {L}
  v_min_u32 v3, 2, v1
  v_sub_u32 v3, s28, v3
  v_max_i32 v3, 0, v3
  v_and_b32 v22, 1, v3
  v_lshlrev_b32 v22, 4, v22
  v_add_u32 v22, s29, v22
  v_lshlrev_b32 v22, 3, v22
  v_lshrrev_b32 v3, 1, v3
  v_add_u32 v3, v3, v22
  v_lshlrev_b32 v3, 7, v3''')
        self.poll(3, 30, vtmp=22)
        e(f'{L}:\n  s_barrier')
        self.stamp(9)
        e(f'''
  s_lshl_b32 s26, s28, 3
  s_sub_u32 s26, s26, 16
  s_mul_i32 s27, s{sW}, 3
  s_add_u32 s28, s26, s27
  s_lshl_b32 s31, s29, 7
  s_mul_i32 s32, s{sW}, 3072''')
        for n in range(3):
            e(f'''
  s_add_u32 s33, s28, {n}
  s_add_u32 s34, s33, s31
  s_lshl_b32 s34, s34, 10
  s_add_u32 s34, s34, s{sLOFF}
  s_cmp_lt_i32 s33, 0
  s_cselect_b32 s34, 0x7ff00000, s34
  s_add_u32 s38, s34, {KF}
  s_add_u32 m0, s32, {KT + n*1024}
  s_nop 0
  buffer_load_dwordx4 v2, {WSR}, s38 offen sc1 lds
  s_add_u32 s38, s34, {VF}
  s_add_u32 m0, s32, {VT + n*1024}
  s_nop 0
  buffer_load_dwordx4 v2, {WSR}, s38 offen sc1 lds''')
        nmid = mid() if mid else 0
        Lnf = self.L('L_nf')
        if isinstance(nmid, str):
            e(nmid)
        else:
            e(f'  s_waitcnt vmcnt({nmid})')
        e(f'''
  s_cmp_ge_i32 s28, 0
  s_cbranch_scc1 {Lnf}
  v_lshlrev_b32 v19, 4, v16
  v_add_u32 v19, s32, v19
  v_mov_b32 v20, 0xf149
  s_mov_b64 exec, 0xffff''')
        for n in range(3):
            Ln = self.L('L_nf')
            e(f'''
  s_add_u32 s33, s28, {n}
  s_cmp_ge_i32 s33, 0
  s_cbranch_scc1 {Ln}
  ds_write_b32 v19, v20 offset:{KT + n*1024 + 48*16 + 8}
{Ln}:''')
        e(f'''
  s_mov_b64 exec, -1
{Lnf}:
  s_waitcnt lgkmcnt(0)
  s_barrier
  s_lshr_b32 s33, s{sW}, 1
  s_lshl_b32 s33, s33, 11
  v_add_u32 v19, s33, v2''')
        self.stamp(10)
        for n in range(NS):
            e(f'  ds_read_b128 v[{FR(n)}:{FR(n)+3}], v19 offset:{KT + n*1024}')
        order = [('K', n) for n in range(18)] + [('V', n) for n in range(18)]
        nxt = NS
        for n in range(18):
            e(f'  s_waitcnt lgkmcnt({NS-1})')
            C = f'v[{Sx(n)}:{Sx(n)+3}]' if n in (0, 1, 16, 17) else '0'
            e(f'  v_mfma_f32_16x16x32_bf16 v[{Sx(n)}:{Sx(n)+3}], v[{FR(n)}:{FR(n)+3}], v[4:7], {C}')
            kind, idx = order[nxt]
            e(f'  ds_read_b128 v[{FR(nxt)}:{FR(nxt)+3}], v19 offset:{(KT if kind == "K" else VT) + idx*1024}')
            nxt += 1
        self.stamp(11)
        e(f'  v_max3_f32 v20, v32, v33, v34\n  v_max3_f32 v21, v35, v36, v37')
        regs = list(range(38, 32 + 72)); k = 0; t = 0
        while k + 1 < len(regs):
            e(f'  v_max3_f32 v{20+t}, v{20+t}, v{regs[k]}, v{regs[k+1]}'); k += 2; t ^= 1
        e('''
  v_max_f32 v20, v20, v21
  v_mov_b32 v21, v20
  v_permlane32_swap_b32 v21, v20
  v_max_f32 v20, v21, v20
  v_mov_b32 v21, v20
  v_permlane16_swap_b32 v21, v20
  v_max_f32 v20, v21, v20
  v_mov_b32 v21, v20''')
        vn = 0
        bg = list(bg or [])
        for p in range(9):
            b = 32 + 8*p
            if p == 2 and hook: hook()
            for _ in range(2):
                if bg and p >= 3: e(bg.pop(0))
            for r in range(b, b + 8, 2):
                e(f'  v_pk_add_f32 v[{r}:{r+1}], v[{r}:{r+1}], v[20:21] neg_lo:[0,1] neg_hi:[0,1]')
            for r in range(b, b + 8):
                e(f'  v_exp_f32 v{r}, v{r}')
            e(f'''
  v_cvt_pk_bf16_f32 v{b}, v{b}, v{b+1}
  v_cvt_pk_bf16_f32 v{b+1}, v{b+2}, v{b+3}
  v_cvt_pk_bf16_f32 v{b+2}, v{b+4}, v{b+5}
  v_cvt_pk_bf16_f32 v{b+3}, v{b+6}, v{b+7}''')
            for T in range(2):
                c = 8 + 4*T
                C = '0' if p == 0 else f'v[{c}:{c+3}]'
                g = 18 + vn
                remaining = min(NS - 1, 35 - g)
                e(f'  s_waitcnt lgkmcnt({remaining})')
                e(f'  v_mfma_f32_16x16x32_bf16 v[{c}:{c+3}], v[{FR(g)}:{FR(g)+3}], v[{b}:{b+3}], {C}')
                if nxt < 36:
                    kind, idx = order[nxt]
                    e(f'  ds_read_b128 v[{FR(nxt)}:{FR(nxt)+3}], v19 offset:{VT + idx*1024}')
                    nxt += 1
                vn += 1
        e(f'''
  v_mov_b32 v21, v12
  v_mov_b32 v22, v12
  v_permlane32_swap_b32 v21, v22
  v_mov_b32 v21, v22
  v_permlane16_swap_b32 v21, v22
  v_rcp_f32 v22, v22''')
        for r in range(8): e(f'  v_mul_f32 v{8+r}, v{8+r}, v22')
        e(f'''
  v_cvt_pk_bf16_f32 v24, v8, v9
  v_cvt_pk_bf16_f32 v25, v10, v11
  v_cvt_pk_bf16_f32 v26, v12, v13
  v_cvt_pk_bf16_f32 v27, v14, v15
  s_lshl_b32 s24, s{sX}, 1
  s_lshr_b32 s25, s{sM}, 4
  s_add_u32 s24, s24, s25
  s_lshl_b32 s24, s24, 3
  s_add_u32 s24, s24, s{sW}
  s_lshl_b32 s33, s24, 4
  s_add_u32 s33, s33, s29
  s_lshl_b32 s33, s33, 10
  s_add_u32 s33, s33, s{sLOFF}
  s_add_u32 s33, s33, {OF}''')
        self.lstore([f'  buffer_store_dwordx4 v[24:27], v2, {WSR}, s33 offen'])

    def wo_w_dma(self):
        e = self.e
        self.srd(AR, P_WO, D*D*2)
        e(f'''
  v_lshrrev_b32 v23, 3, v1
  v_and_b32 v24, 7, v1
  v_bfe_u32 v25, v23, 1, 2
  v_lshlrev_b32 v25, 1, v25
  v_xor_b32 v24, v24, v25
  v_mul_u32_u24 v25, 896, v23
  v_lshl_add_u32 v26, v24, 4, v25
  v_mov_b32 v24, 0x7ff00000
  v_cmp_le_u32 vcc, 4, v23
  s_mul_i32 s24, s{sW}, {2*28*896}
  s_lshl_b32 s25, s{sDBLK}, 7
  v_cndmask_b32 v27, v26, v24, vcc
  s_add_u32 s24, s24, s25
  s_lshl_b32 s26, s{sW}, 13
  s_add_u32 s26, s26, {WOL}''')
        for hh in range(2):
            for n4 in range(4):
                e(f'''
  s_add_u32 m0, s26, {hh*4096 + n4*1024}
  s_add_u32 s27, s24, {(hh*28 + n4*8)*896}
  buffer_load_dwordx4 v{27 if n4 == 3 else 26}, {AR}, s27 offen lds''')
    def wo_main(self):
        e = self.e
        of = lambda hh: 64 + 4*hh
        acc = lambda nt: 96 + 4*nt
        wf = lambda n: 32 + 4*(n % 8)
        e(f'''
  s_and_b32 s24, s{sW}, 3
  s_lshl_b32 s25, s{sSBLK}, 2
  s_add_u32 s30, s24, s25
  s_lshr_b32 s31, s{sW}, 2
  s_lshl_b32 s28, s31, 3
  s_add_u32 s32, s{sPH}, 2
  v_lshrrev_b32 v3, 4, v1
  v_bfe_u32 v4, v1, 2, 2
  v_lshl_add_u32 v5, v3, 2, v4
  v_bfe_u32 v6, v5, 1, 2
  v_lshlrev_b32 v5, 7, v5
  v_and_b32 v7, 1, v1
  v_lshl_add_u32 v5, v7, 3, v5
  v_bfe_u32 v7, v1, 1, 1
  v_lshl_add_u32 v5, v7, 4, v5
  s_lshl_b32 s24, s31, 15
  s_add_u32 s24, s24, {WOL}
  v_add_u32 v5, s24, v5
  v_xor_b32 v7, 0, v6
  v_lshl_add_u32 v8, v7, 5, v5
  v_xor_b32 v7, 1, v6
  v_lshl_add_u32 v9, v7, 5, v5
  v_xor_b32 v7, 2, v6
  v_lshl_add_u32 v10, v7, 5, v5
  v_xor_b32 v7, 3, v6
  v_lshl_add_u32 v11, v7, 5, v5
  s_lshl_b32 s33, s30, 4
  s_add_u32 s33, s33, s28
  s_lshl_b32 s33, s33, 10
  s_add_u32 s33, s33, s{sLOFF}
  s_add_u32 s33, s33, {OF}''')
        seq = [(hh, nt) for hh in range(8) for nt in range(4)]
        def wrd(n):
            hh, nt = seq[n]; r = wf(n)
            e(f'  ds_read_b64_tr_b16 v[{r}:{r+1}], v{8+nt} offset:{hh*4096}\n  ds_read_b64_tr_b16 v[{r+2}:{r+3}], v{8+nt} offset:{hh*4096+2048}')
        NW = 7
        wf = lambda n: 32 + 4*(n % NW)
        for n in range(NW): wrd(n)
        self.wgpoll(f'''
  s_lshr_b32 s26, s{sSBLK}, 1
  s_and_b32 s27, s26, 1
  s_lshl_b32 s27, s27, 4
  v_and_b32 v3, 15, v1
  v_add_u32 v3, s27, v3
  v_lshlrev_b32 v3, 2, v3
  s_lshl_b32 s26, s{sX}, 7
  s_add_u32 s26, s26, {LF_OFF}
  v_add_u32 v3, s26, v3''', 32)
        self.stamp(14)
        for hh in range(8):
            e(f'  s_add_u32 s34, s33, {hh*1024}\n  buffer_load_dwordx4 v[{of(hh)}:{of(hh)+3}], v2, {WSR}, s34 offen sc1')
        for n, (hh, nt) in enumerate(seq):
            if nt == 0: e(f'  s_waitcnt vmcnt({7 - hh})')
            e(f'  s_waitcnt lgkmcnt({2*min(NW - 1, 31 - n)})')
            c = acc(nt); C = '0' if hh == 0 else f'v[{c}:{c+3}]'
            e(f'  v_mfma_f32_16x16x32_bf16 v[{c}:{c+3}], v[{of(hh)}:{of(hh)+3}], v[{wf(n)}:{wf(n)+3}], {C}')
            if n + NW < 32: wrd(n + NW)
        self.stamp(15)
        La = self.L('L_wo'); Lb = self.L('L_wo')
        e(f'''
  s_lshl_b32 s24, s{sW}, 11
  v_add_u32 v4, s24, v2
  s_xor_b32 s25, s{sW}, 4
  s_lshl_b32 s25, s25, 11
  v_add_u32 v5, s25, v2
  v_lshrrev_b32 v6, 4, v1
  v_lshlrev_b32 v6, 2, v6
  s_and_b32 s24, s{sW}, 3
  s_lshl_b32 s24, s24, 4
  v_add_u32 v6, s24, v6
  v_mul_u32_u24 v6, 272, v6
  v_and_b32 v7, 15, v1
  v_lshl_add_u32 v6, v7, 2, v6
  s_lshl_b32 s24, s31, 7
  s_add_u32 s24, s24, {RES}
  v_add_u32 v6, s24, v6''')
        for t in range(2):
            for r in range(4): e(f'  ds_read_b32 v{112 + t*4 + r}, v6 offset:{r*272 + t*64}')
        e(f'''
  s_cmp_eq_u32 s31, 0
  s_cbranch_scc0 {La}
  ds_write_b128 v4, v[104:107]
  ds_write_b128 v4, v[108:111] offset:1024
  s_branch {Lb}
{La}:
  ds_write_b128 v4, v[96:99]
  ds_write_b128 v4, v[100:103] offset:1024
  s_nop 1
  v_mov_b32 v96, v104
  v_mov_b32 v97, v105
  v_mov_b32 v98, v106
  v_mov_b32 v99, v107
  v_mov_b32 v100, v108
  v_mov_b32 v101, v109
  v_mov_b32 v102, v110
  v_mov_b32 v103, v111
{Lb}:''')
        for k in range(8): e(f'  s_waitcnt lgkmcnt(2)\n  v_add_f32 v{96+k}, v{96+k}, v{112+k}' if k == 0 else f'  v_add_f32 v{96+k}, v{96+k}, v{112+k}')
        e(f'''
  s_waitcnt lgkmcnt(0)
  s_barrier
  ds_read_b128 v[104:107], v5
  ds_read_b128 v[108:111], v5 offset:1024
  s_lshl_b32 s24, s{sDBLK}, 1
  s_add_u32 s24, s24, s31
  s_lshl_b32 s25, s30, 4
  s_add_u32 s26, s25, s24
  s_lshl_b32 s27, s26, 7
  s_add_u32 s27, s27, s{sLOFF}
  s_add_u32 s27, s27, {ST}
  v_lshrrev_b32 v3, 4, v1
  v_lshlrev_b32 v3, 5, v3
  s_lshl_b32 s28, s{sLAY}, 13
  s_add_u32 s28, s28, {XF_OFF}
  s_lshl_b32 s29, s26, 2
  s_add_u32 s29, s29, s28
  s_waitcnt lgkmcnt(0)''')
        for k in range(8): e(f'  v_add_f32 v{96+k}, v{96+k}, v{104+k}')
        for r in range(4):
            e(f'''
  v_add_f32 v{104+2*r}, v{96+r}, v{100+r}
  v_mul_f32 v{105+2*r}, v{96+r}, v{96+r}
  v_fmac_f32 v{105+2*r}, v{100+r}, v{100+r}''')
        for sh in (8, 4, 2, 1):
            for k in range(8): e(f'  v_add_f32 v{104+k}, v{104+k}, v{104+k} row_ror:{sh} row_mask:0xf bank_mask:0xf')
        e(f'''
  v_cmp_eq_u32 vcc, 0, v7
  s_and_saveexec_b64 s[36:37], vcc''')
        self.lstore([f'  buffer_store_dwordx4 v[104:107], v3, {WSR}, s27 offen', f'  buffer_store_dwordx4 v[108:111], v3, {WSR}, s27 offen offset:16'])
        e('  s_mov_b64 exec, s[36:37]')
        for t in range(2):
            for r in range(4): e(f'  ds_write_b32 v6, v{96 + t*4 + r} offset:{r*272 + t*64}')
        e(f'''
  v_mov_b32 v4, 1
  s_lshl_b32 s34, s25, 2
  s_add_u32 s34, s34, s28
  v_min_u32 v5, 13, v1
  v_lshlrev_b32 v5, 2, v5
  v_add_u32 v5, s34, v5
  s_lshl_b32 s27, s25, 7
  s_add_u32 s27, s27, s{sLOFF}
  s_add_u32 s27, s27, {ST}
  v_lshl_add_u32 v8, v7, 7, v3
  v_mov_b32 v9, 0x7ff00000
  v_cmp_le_u32 vcc, 14, v7
  s_nop 1
  v_cndmask_b32 v8, v8, v9, vcc
  s_waitcnt vmcnt(0)
  s_mov_b64 exec, 1''')
        self.local_flag_store(4, 29)
        e('  s_mov_b64 exec, -1')
        self.stamp(16)
        self.poll(5, '1')
        self.stamp(17)
        e(f'''
  buffer_load_dwordx4 v[104:107], v8, {WSR}, s27 offen sc1
  buffer_load_dwordx4 v[108:111], v8, {WSR}, s27 offen offset:16 sc1
  s_mov_b32 s24, {f32bits(1.0/448)}
  s_mov_b32 s25, {f32bits(1e-5)}
  s_waitcnt vmcnt(0)''')
        for sh in (8, 4, 2, 1):
            for k in range(8): e(f'  v_add_f32 v{104+k}, v{104+k}, v{104+k} row_ror:{sh} row_mask:0xf bank_mask:0xf')
        for r in range(4):
            su, sq = 104 + 2*r, 105 + 2*r
            e(f'  v_mul_f32 v{su}, s24, v{su}\n  v_mul_f32 v{sq}, s24, v{sq}')
        for r in range(4):
            su, sq = 104 + 2*r, 105 + 2*r
            e(f'  v_fma_f32 v{sq}, -v{su}, v{su}, v{sq}\n  v_max_f32 v{sq}, 0, v{sq}\n  v_add_f32 v{8+r}, s25, v{sq}')
        for r in range(4): e(f'  v_rsq_f32 v{8+r}, v{8+r}')
        for r in range(4): e(f'  v_mul_f32 v{12+r}, v{8+r}, v{8+r}')
        for r in range(4): e(f'  v_fma_f32 v{12+r}, v{12+r}, v{105+2*r}, s25')
        for r in range(4): e(f'  v_rsq_f32 v{12+r}, v{12+r}')
        for r in range(4): e(f'  v_sub_f32 v{96+r}, v{96+r}, v{104+2*r}\n  v_sub_f32 v{100+r}, v{100+r}, v{104+2*r}')
        for r in range(4): e(f'  v_mul_f32 v{8+r}, v{8+r}, v{12+r}')
        for r in range(4): e(f'  v_mul_f32 v{96+r}, v{96+r}, v{8+r}\n  v_mul_f32 v{100+r}, v{100+r}, v{8+r}')
        e(f'''
  v_cvt_pk_bf16_f32 v16, v96, v97
  v_cvt_pk_bf16_f32 v17, v98, v99
  v_cvt_pk_bf16_f32 v18, v100, v101
  v_cvt_pk_bf16_f32 v19, v102, v103
  s_lshl_b32 s24, s{sDBLK}, 1
  s_add_u32 s24, s24, s31
  s_lshl_b32 s24, s24, 7
  s_add_u32 s24, s24, s30
  s_lshl_b32 s24, s24, 10
  s_add_u32 s24, s24, s{sLOFF}
  s_add_u32 s24, s24, {HT}
  v_permlane16_swap_b32 v16, v18
  v_permlane16_swap_b32 v17, v19
  buffer_store_dwordx4 v[16:19], v2, {WSR}, s24 offen sc1''')

    def b_main(self, which, bg=None, bg_base=None):
        e = self.e
        nks = 16 if which == 1 else 14
        Wf = lambda ks, tl: 128 + (ks*2 + tl)*4
        acc = lambda a, b: 64 + (a*2 + b)*16
        NB = self.o.get('nb', 14)
        Af = lambda n: 8 + 4*(n % NB)
        if which == 1:
            e(f'''
  s_mul_i32 s24, s{sSBLK}, 112
  s_min_u32 s25, s{sW}, 6
  s_lshl_b32 s25, s25, 4
  s_add_u32 s24, s24, s25
  s_load_dwordx4 s[40:43], s[{P_B1}:{P_B1+1}], s24''')
        else:
            self.srd(BR, P_B2, S*2)
            e(f'''
  s_lshl_b32 s24, s{sSBLK}, 7
  v_lshlrev_b32 v5, 1, v1
  buffer_load_ushort v240, v5, {BR}, s24 offen''')
        NT = 128 if which == 1 else 112
        e(f'''
  s_add_u32 s32, s{sPH}, {3 if which == 1 else 4}
  s_lshl_b32 s34, s{sDBLK}, 1
  s_mul_i32 s34, s34, {NT}
  s_mul_i32 s25, s{sW}, {nks}
  s_add_u32 s34, s34, s25
  s_lshl_b32 s34, s34, 10
  s_add_u32 s34, s34, s{sLOFF}
  s_add_u32 s34, s34, {HT if which == 1 else UF}
  s_add_u32 s35, s34, {NT*1024}''')
        self.wgpoll(f'''
  v_and_b32 v3, 3, v1
  v_mul_u32_u24 v3, 7, v3
  v_add_u32 v3, s{sDBLK}, v3
  v_lshlrev_b32 v3, 3, v3
  v_bfe_u32 v5, v1, 2, 3
  v_add_u32 v3, v5, v3
  v_lshlrev_b32 v3, 7, v3''' + (f'''
  v_and_b32 v5, 3, v1
  v_add_u32 v5, 28, v5
  v_lshlrev_b32 v5, 3, v5
  v_bfe_u32 v6, v1, 2, 2
  v_add_u32 v5, v5, v6
  v_lshlrev_b32 v5, 7, v5
  v_cmp_le_u32 vcc, 32, v1
  s_cmp_eq_u32 s{sLAY}, 0
  s_cselect_b64 s[36:37], vcc, 0
  v_cndmask_b32 v3, v3, v5, s[36:37]''' if which == 2 else ''), 32)
        self.stamp(20 if which == 1 else 26)
        if self.o.get('prio'):
            Lp = self.L('L_pr')
            e(f'  s_cmp_lt_u32 s{sW}, 4\n  s_cbranch_scc1 {Lp}\n  s_setprio {self.o["prio"]}\n{Lp}:')
        nfr = 2*nks
        def ld(n):
            ks, dt = n // 2, n % 2
            r = Af(n)
            e(f'  buffer_load_dwordx4 v[{r}:{r+3}], v2, {WSR}, s{34+dt} offen offset:{(ks % 4)*1024} sc1')
            if dt == 1 and ks % 4 == 3: e('  s_add_u32 s34, s34, 4096\n  s_add_u32 s35, s35, 4096')
        issued = 0
        while issued < min(NB, nfr):
            ld(issued); issued += 1
        for ks in range(nks):
            e(f'  s_waitcnt vmcnt({issued - (2*ks + 2)})')
            if ks == 0: self.stamp(21 if which == 1 else 27)
            for dt in range(2):
                x = Af(2*ks + dt)
                for tl in range(2):
                    w = Wf(ks, tl)
                    if which == 1:
                        c = acc(tl, dt); C = '0' if ks == 0 else f'v[{c}:{c+15}]'
                        e(f'  v_mfma_f32_32x32x16_bf16 v[{c}:{c+15}], v[{w}:{w+3}], v[{x}:{x+3}], {C}')
                    else:
                        c = acc(dt, tl); C = '0' if ks == 0 else f'v[{c}:{c+15}]'
                        e(f'  v_mfma_f32_32x32x16_bf16 v[{c}:{c+15}], v[{x}:{x+3}], v[{w}:{w+3}], {C}')
            for _ in range(2):
                if issued < nfr:
                    ld(issued); issued += 1
        if self.o.get('prio'): e('  s_setprio 0')
        self.stamp(22 if which == 1 else 28)
        if which == 2 and self.o.get('wqwarm', 1):
            Lq = self.L('L_wq')
            e(f'''
  s_cmp_lg_u32 s{sLAY}, 0
  s_cbranch_scc1 {Lq}
  s_and_b32 s24, s{sM}, 15
  s_mul_i32 s24, s24, {90*1024}
  s_add_u32 s24, s24, {WQT}
  s_lshl_b32 s25, s{sW}, 10
  s_add_u32 s24, s24, s25''')
            for n in range(11):
                r = 128 + 4*n
                e(f'  s_add_u32 s27, s24, {n*8192}\n  buffer_load_dwordx4 v[{r}:{r+3}], v2, {WSR}, s27 offen sc1')
            e(f'{Lq}:')
        e(f'''
  v_and_b32 v3, 31, v1
  v_mul_u32_u24 v3, 272, v3
  v_lshrrev_b32 v4, 5, v1
  v_lshl_add_u32 v3, v4, 4, v3
  s_mul_i32 s24, s{sW}, 17408
  v_add_u32 v3, s24, v3''')
        for a in range(2):
            for b in range(2):
                c = acc(a, b)
                for q in range(4):
                    e(f'  ds_write_b128 v3, v[{c+4*q}:{c+4*q+3}] offset:{b*32*272 + a*128 + q*32}')
        e(f'''
  v_mul_u32_u24 v3, 272, v1
  s_lshl_b32 s24, s{sW}, 5
  v_add_u32 v3, s24, v3
  v_add_u32 v5, 69632, v3
  s_waitcnt lgkmcnt(0)
  s_barrier''')
        for p in range(8):
            r = 8 + p*8
            base = 3 if p < 4 else 5
            o = (p % 4)*17408
            e(f'  ds_read_b128 v[{r}:{r+3}], v{base} offset:{o}\n  ds_read_b128 v[{r+4}:{r+7}], v{base} offset:{o+16}')
        if which == 2:
            e(f'  v_add_u32 v6, {RES}, v3\n  ds_read_b128 v[72:75], v6\n  ds_read_b128 v[76:79], v6 offset:16')
        extra = 2 if which == 2 else 0
        bg = list(bg or [])
        if bg_base: bg_base()
        for p in range(1, 8):
            if bg: e(bg.pop(0))
            e(f'  s_waitcnt lgkmcnt({min(15, (7 - p)*2 + extra)})')
            for k in range(8): e(f'  v_add_f32 v{8+k}, v{8+k}, v{8+p*8+k}')
        e('  s_waitcnt lgkmcnt(0)')
        for l in bg: e(l)
        self.stamp(23 if which == 1 else 29)
        if which == 1:
            c0 = -2.0*LOG2E*math.sqrt(2.0/math.pi); c1 = c0*0.044715
            e(f'  s_mov_b32 s24, {f32bits(c0)}\n  s_mov_b32 s25, {f32bits(c1)}')
            for k in range(8):
                src = 40 + k//2
                if k % 2 == 0: e(f'  s_lshl_b32 s26, s{src}, 16')
                else: e(f'  s_and_b32 s26, s{src}, 0xffff0000')
                e(f'  v_add_f32 v{8+k}, s26, v{8+k}')
            for k in range(8): e(f'  v_mul_f32 v{16+k}, v{8+k}, v{8+k}\n  v_mov_b32 v{24+k}, s24')
            for k in range(8): e(f'  v_fmac_f32 v{24+k}, s25, v{16+k}')
            for k in range(8): e(f'  v_mul_f32 v{24+k}, v{24+k}, v{8+k}')
            for k in range(8): e(f'  v_exp_f32 v{24+k}, v{24+k}')
            for k in range(8): e(f'  v_add_f32 v{24+k}, 1.0, v{24+k}')
            for k in range(8): e(f'  v_rcp_f32 v{24+k}, v{24+k}')
            for k in range(8): e(f'  v_mul_f32 v{8+k}, v{8+k}, v{24+k}')
            Ls = self.L('L_b1')
            e(f'''
  v_cvt_pk_bf16_f32 v16, v8, v9
  v_cvt_pk_bf16_f32 v17, v10, v11
  v_cvt_pk_bf16_f32 v18, v12, v13
  v_cvt_pk_bf16_f32 v19, v14, v15
  s_mul_i32 s24, s{sSBLK}, 7
  s_add_u32 s24, s24, s{sW}
  s_lshr_b32 s25, s24, 1
  s_and_b32 s24, s24, 1
  s_lshl_b32 s26, s{sDBLK}, 1
  s_mul_i32 s26, s26, 112
  s_add_u32 s26, s26, s25
  s_lshl_b32 s26, s26, 10
  s_lshl_b32 s24, s24, 9
  s_add_u32 s26, s26, s24
  s_add_u32 s26, s26, s{sLOFF}
  s_add_u32 s26, s26, {UF}
  v_and_b32 v3, 31, v1
  v_lshlrev_b32 v3, 4, v3
  v_lshrrev_b32 v4, 5, v1
  v_mul_u32_u24 v4, {112*1024}, v4
  v_add_u32 v3, v3, v4
  s_cmp_eq_u32 s{sW}, 7
  s_cbranch_scc1 {Ls}
  buffer_store_dwordx4 v[16:19], v3, {WSR}, s26 offen sc1
{Ls}:''')
        else:
            e('  v_lshlrev_b32 v4, 16, v240')
            for k in range(8): e(f'  v_add_f32 v{8+k}, v{8+k}, v4\n  v_add_f32 v{8+k}, v{8+k}, v{72+k}')
            La = self.L('L_b2'); Lb = self.L('L_b2')
            e(f'''
  ds_write_b128 v6, v[8:11]
  ds_write_b128 v6, v[12:15] offset:16
  v_cvt_pk_bf16_f32 v16, v8, v9
  v_cvt_pk_bf16_f32 v17, v10, v11
  v_cvt_pk_bf16_f32 v18, v12, v13
  v_cvt_pk_bf16_f32 v19, v14, v15
  s_cmp_eq_u32 s{sLAY}, 0
  s_cbranch_scc0 {La}
  v_and_b32 v3, 15, v1
  v_lshrrev_b32 v4, 2, v3''')
            self.pi_of(5, 4, 7)
            e(f'''
  s_and_b32 s24, s{sW}, 3
  v_xor_b32 v5, s24, v5
  v_lshl_add_u32 v5, v3, 2, v5
  v_lshlrev_b32 v5, 4, v5
  v_lshrrev_b32 v4, 4, v1
  v_mul_u32_u24 v4, 14336, v4
  v_add_u32 v5, v5, v4
  s_lshl_b32 s24, s{sSBLK}, 2
  s_mul_i32 s24, s24, 14
  s_lshl_b32 s25, s{sDBLK}, 1
  s_add_u32 s24, s24, s25
  s_lshr_b32 s25, s{sW}, 2
  s_add_u32 s24, s24, s25
  s_lshl_b32 s24, s24, 10
  s_add_u32 s24, s24, {ACT0 + X2}''')
            self.lstore([f'  buffer_store_dwordx4 v[16:19], v5, {WSR}, s24 offen'])
            e(f'  s_branch {Lb}\n{La}:')
            self.srd(BR, P_OUT, S*D*2)
            e(f'''
  s_mul_i32 s24, s{sSBLK}, {64*896}
  s_lshl_b32 s25, s{sDBLK}, 7
  s_add_u32 s24, s24, s25
  s_lshl_b32 s25, s{sW}, 4
  s_add_u32 s24, s24, s25
  v_mul_u32_u24 v5, 896, v1
  buffer_store_dwordx4 v[16:19], v5, {BR}, s24 offen
{Lb}:''')

    def build(self):
        e = self.e
        self.prologue()
        self.qkv_w0_issue()
        self.t12_issue(base=86016)
        self.init_flags()
        self.stamp(0)
        self.tlb_warm()
        e('  s_barrier')
        self.publish_init()
        self.stamp(1)
        self.qkv_w0_finish_a(barrier=False)
        self.t12_tr(32, base=86016)
        e('  s_waitcnt lgkmcnt(0)\n  s_barrier')
        self.qkv_x_setup(0)
        self.qkv_x_dma(0, 1)
        self.qkv_x_dma(1, 1)
        self.t12_store(32, sc='')
        self.qkv_w0_finish_b()
        self.qkv_colsum_b()
        self.stamp(2)
        e('  s_branch L_qkv_main')
        e('L_layer:')
        self.stamp(0)
        self.qkv_x_setup(1)
        self.qkv_w1_issue()
        self.wgpoll(f'''
  v_min_u32 v3, 13, v1
  s_lshr_b32 s24, s{sM}, 4
  s_mul_i32 s24, s24, 14
  v_add_u32 v3, s24, v3
  v_lshlrev_b32 v3, 2, v3
  s_lshl_b32 s24, s{sX}, 7
  s_add_u32 s24, s24, {LF_OFF}
  v_add_u32 v3, s24, v3''', sPH)
        self.stamp(3)
        self.qkv_x_dma(0, 1)
        e('  s_waitcnt vmcnt(7)\n  s_barrier')
        self.stamp(1)
        self.qkv_w1_finish()
        self.stamp(2)
        self.qkv_x_dma(1, 1)
        e('L_qkv_main:')
        self.qkv_main()
        self.stamp(6)
        self.signal_g(1)
        self.stamp(7)
        Lh2 = self.L('L_h')
        e(f'  s_cmp_lg_u32 s{sLAY}, 0\n  s_cbranch_scc1 {Lh2}')
        self.res_load()
        self.handshake(VSC + 1024)
        e('  s_waitcnt vmcnt(0) lgkmcnt(0)\n  s_barrier')
        self.res_store()
        self.handshake_read(VSC + 1024)
        Ltf = self.L('L_tf'); Ltg = self.L('L_tf')
        e(f'''
  s_cmp_lg_u32 s{sW}, 0
  s_cbranch_scc1 {Ltf}
  s_lshl_b32 s25, s{sX}, 7
  s_lshl_b32 s26, s{sM}, 2
  s_add_u32 s25, s25, s26
  s_add_u32 s25, s25, {LF_OFF}
  v_mov_b32 v4, 1
  s_mov_b64 exec, 1
  s_cmp_lg_u32 s{sFAST}, 0
  s_cbranch_scc1 {Ltg}
  buffer_wbl2 sc1
  s_waitcnt vmcnt(0)
{Ltg}:''')
        self.local_flag_store(4, 25)
        e(f'  s_mov_b64 exec, -1\n{Ltf}:')
        e(f'{Lh2}:')
        self.stamp(8)
        w1 = self.w_loads(32)
        self.w1_base()
        def att_hook():
            Lc = self.L('L_am')
            e(f'  s_cmp_ge_u32 s{sM}, 28\n  s_cbranch_scc1 {Lc}')
            self.wo_w_dma()
            e(f'{Lc}:')
            Ln = self.L('L_am')
            e(f'  s_cmp_lg_u32 s{sLAY}, 0\n  s_cbranch_scc1 {Ln}')
            e(f'''
  s_lshl_b32 s24, s{sX}, 7
  s_add_u32 s24, s24, {LF_OFF}
  v_and_b32 v3, 31, v1
  v_lshlrev_b32 v3, 2, v3
  v_add_u32 v3, s24, v3''')
            self.poll(3, '1', vtmp=22)
            Li = self.L('L_am')
            e(f'  s_cmp_lg_u32 s{sFAST}, 0\n  s_cbranch_scc1 {Li}\n  buffer_inv sc1\n  s_waitcnt vmcnt(0)\n{Li}:\n{Ln}:')
        bg = list(w1[:12])
        self.att(mid=None, bg=bg, hook=att_hook)
        self.stamp(12)
        self.signal_l(2)
        self.stamp(13)
        e(f'  s_cmp_ge_u32 s{sM}, 28\n  s_cbranch_scc1 L_idle')
        self.wo_main()
        self.stamp(18)
        self.signal_g(3)
        self.stamp(19)
        for l in w1[12:]: e(l)
        w2 = self.w_loads(28)
        self.b_main(1, bg=w2[:8], bg_base=self.w2_base)
        self.stamp(24)
        self.signal_g(4)
        self.stamp(25)
        for l in w2[8:]: e(l)
        self.b_main(2)
        self.stamp(30)
        self.signal_l(5)
        self.stamp(31)
        e('  s_branch L_skip\nL_idle:')
        Lns = self.L('L_ns')
        e(f'''
  s_cmp_lg_u32 s{sLAY}, 0
  s_cbranch_scc1 L_skip
  s_lshl_b32 s61, s{sX}, 2
  s_add_u32 s61, s61, s{sM}
  s_sub_u32 s61, s61, 28
  s_cmp_ge_u32 s61, 16
  s_cbranch_scc1 {Lns}''')
        self.qkv_w0_issue()
        e('  s_waitcnt vmcnt(0)\n  s_barrier')
        self.qkv_w0_finish_a()
        self.qkv_w0_finish_b()
        self.qkv_colsum_b()
        e('  s_nop 15')
        self.qkv_w0_save()
        self.signal_g(4)
        e(f'{Lns}:\n  s_and_b32 s61, s{sM}, 15\n  s_add_u32 s32, s{sPH}, 5')
        self.wgpoll(f'''
  v_min_u32 v3, 13, v1
  s_lshr_b32 s24, s{sM}, 4
  s_mul_i32 s24, s24, 14
  v_add_u32 v3, s24, v3
  v_lshlrev_b32 v3, 2, v3
  s_lshl_b32 s24, s{sX}, 7
  s_add_u32 s24, s24, {LF_OFF}
  v_add_u32 v3, s24, v3''', 32)
        e('L_skip:')
        e(f'''
  s_add_u32 s{sLAY}, s{sLAY}, 1
  s_add_u32 s{sPH}, s{sPH}, 5
  s_add_u32 s{sLOFF}, s{sLOFF}, {LSTRIDE}
  s_cmp_lt_u32 s{sLAY}, 2
  s_cbranch_scc1 L_layer''')
        self.stamp_flush()
        e('L_end:\n  s_endpgm')
        return self.finish()

    def build_prep(self):
        e = self.e
        e(f'''
  s_cmp_ge_u32 s2, 256
  s_cbranch_scc1 LP_end
{'  s_memrealtime s[86:87]' if self.timing else ''}
  s_load_dwordx16 s[64:79], s[0:1], 0
  s_load_dwordx2 s[84:85], s[0:1], 80
  v_lshrrev_b32 v3, 6, v0
  v_and_b32 v1, 63, v0
  v_readfirstlane_b32 s{sW}, v3
  v_lshlrev_b32 v2, 4, v1
  s_waitcnt lgkmcnt(0)''')
        self.srd(WSR, P_WS, WS_SIZE)
        self.t12_issue(base=0)
        L = self.L('LP_z')
        e(f'''
  s_cmp_lg_u32 s{sW}, 0
  s_cbranch_scc1 {L}
  v_mov_b32 v12, 0
  v_mov_b32 v13, 0
  v_mov_b32 v14, 0
  v_mov_b32 v15, 0
  s_lshl_b32 s24, s{sWG}, 8
  s_mov_b64 exec, 0xffff
  buffer_store_dwordx4 v[12:15], v2, {WSR}, s24 offen
  s_mov_b64 exec, -1
{L}:
  s_waitcnt vmcnt(0)''')
        self.t12_process(32, base=0, sc='')
        if self.o.get('ptime'):
            e(f'''
  s_waitcnt vmcnt(0)
  s_memrealtime s[88:89]
  s_waitcnt lgkmcnt(0)
  v_mov_b32 v4, s86
  v_mov_b32 v5, s88
  s_lshl_b32 s24, s{sWG}, 3
  s_add_u32 s24, s24, s{sW}
  s_lshl_b32 s24, s24, 3
  s_add_u32 s24, s24, 0xC0000
  s_mov_b64 exec, 1
  buffer_store_dwordx2 v[4:5], off, {WSR}, s24
  s_mov_b64 exec, -1''')
        e('LP_end:\n  s_endpgm')
    def finish(self):
        body = self.a.text()
        pf = ''
        if self.o.get('codepf', 1):
            pf = f'''  s_lshl_b32 s24, s{sM}, 3
  s_add_u32 s24, s24, s{sW}
  s_lshl_b32 s24, s24, 7
  s_cmp_ge_u32 s24, L_end-{NAME}_kernel-128
  s_cbranch_scc1 L_nopf
  v_add_u32 v4, s24, v2
  s_mov_b64 exec, 0xff
  global_load_dwordx4 v[124:127], v4, s[88:89]
  s_mov_b64 exec, -1
L_nopf:'''
        body = body.replace('  CODEPF', pf)
        head = open(f'cdna_kernels/{NAME}.s.ref').read().split('; Override launch')[0]
        KD = lambda nm, vg: f'''.p2align 6
.amdhsa_kernel {nm}
  .amdhsa_next_free_vgpr {vg}
  .amdhsa_next_free_sgpr 102
  .amdhsa_accum_offset {vg}
  .amdhsa_group_segment_fixed_size 0
  .amdhsa_kernarg_size 88
  .amdhsa_user_sgpr_count 2
  .amdhsa_user_sgpr_kernarg_segment_ptr 1
  .amdhsa_system_sgpr_workgroup_id_x 1
.end_amdhsa_kernel
'''
        return head + f'''; @launch grid=(256,1,1) block=(512,1,1) lds={LDS_TOTAL}
.amdgcn_target "amdgcn-amd-amdhsa--gfx950"
.text
.globl {NAME}_kernel
.p2align 8
.type {NAME}_kernel,@function
{NAME}_kernel:
''' + body + '.section .rodata,"a"\n' + KD(NAME + '_kernel', 256)

if __name__ == '__main__':
    import argparse
    ap = argparse.ArgumentParser()
    ap.add_argument('--timing', action='store_true')
    ap.add_argument('--slow', action='store_true')
    ap.add_argument('--dbgq', action='store_true')
    ap.add_argument('--nb', type=int, default=14)
    ap.add_argument('--prio', type=int, default=0)
    ap.add_argument('-o', default=f'cdna_kernels/{NAME}.s')
    args = ap.parse_args()
    open(args.o, 'w').write(Gen(args.timing, dict(slow=args.slow, dbgq=args.dbgq, nb=args.nb, prio=args.prio)).build())
    print('wrote', args.o)
```
